```python
import torch

def _softmax(x, axis=-1):
    return torch.softmax(x, dim=axis)
def _gelu(x):
    return torch.nn.functional.gelu(x, approximate="tanh")
def _silu(x):
    return torch.nn.functional.silu(x)
def _sigmoid(x):
    return torch.sigmoid(x)
def _layernorm(x, axis=-1, eps=1e-5):
    m = x.mean(dim=axis, keepdim=True)
    v = x.var(dim=axis, keepdim=True, unbiased=False)
    return (x - m) / torch.sqrt(v + eps)
def _scatter_add(tgt, idx, src, axis=0):
    return tgt.clone().index_add_(axis, idx, src)
def _segment_sum(src, seg, n):
    out = torch.zeros((n,) + src.shape[1:], dtype=src.dtype)
    return out.index_add_(0, seg, src)
def _pad(x, pw):
    flat = tuple(v for pair in reversed(pw) for v in pair)
    return torch.nn.functional.pad(x, flat)

kernel_name = 'recurrent_scan__softmax_full_mha__glu_gated_swiglu__prompt'

def setup_inputs():

    _w = (lambda a: (lambda t: t.to(torch.bfloat16) if t.is_floating_point() else t)(torch.as_tensor(a)))
    def _A_setup():
        B, S, D = 1, 2048, 512
        return {
            "x": _w((lambda *s: torch.randn(*s, dtype=torch.bfloat16) * 0.05)(B, S, D)),
            "wqkv": _w((lambda *s: torch.randn(*s, dtype=torch.bfloat16) * 0.2)(D, 3 * D)),
            "wo": _w((lambda *s: torch.randn(*s, dtype=torch.bfloat16) * 0.2)(D, D)),
        }
    _A_in = _A_setup()

    def _B_setup():
        B, S, D, F = 1, 2048, 512, 1792
        return {
            "x": _w((lambda *s: torch.randn(*s, dtype=torch.bfloat16) * 0.05)(B, S, D)),
            "w1": _w((lambda *s: torch.randn(*s, dtype=torch.bfloat16) * 0.1)(D, F) * (2.0 / D) ** 0.5),
            "w3": _w((lambda *s: torch.randn(*s, dtype=torch.bfloat16) * 0.1)(D, F) * (2.0 / D) ** 0.5),
            "w2": _w((lambda *s: torch.randn(*s, dtype=torch.bfloat16) * 0.1)(F, D) * (2.0 / F) ** 0.5),
        }
    _B_in = _B_setup()

    return {
        "A_x": _A_in["x"],
        "A_wqkv": _A_in["wqkv"],
        "A_wo": _A_in["wo"],
        "B_x": _B_in["x"],
        "B_w1": _B_in["w1"],
        "B_w3": _B_in["w3"],
        "B_w2": _B_in["w2"],
    }

def reference(A_x, A_wqkv, A_wo, B_x, B_w1, B_w3, B_w2):
    def _A_ref(x, wqkv, wo):
        B, S, D = x.shape
        H = 32; Dh = D // H
        qkv = (lambda x, *d: x.permute(*d))((x @ wqkv).reshape(B, S, 3, H, Dh), 2, 0, 3, 1, 4)
        q, k, v = qkv[0], qkv[1], qkv[2]
        scale = Dh ** -0.5
        scores = torch.einsum("bhqd,bhkd->bhqk", q, k) * scale
        p = _softmax(scores, axis=-1)
        o = torch.einsum("bhqk,bhkd->bhqd", p, v)
        return (lambda x, *d: x.permute(*d))(o, 0, 2, 1, 3).reshape(B, S, D) @ wo

    def _B_ref(x, w1, w3, w2):
        gate = torch.einsum("bsd,df->bsf", x, w1)
        up = torch.einsum("bsd,df->bsf", x, w3)
        h = _silu(gate) * up
        out = torch.einsum("bsf,fd->bsd", h, w2)
        return out

    x = A_x
    xn = _layernorm(x, axis=-1)
    s = _A_ref(xn, A_wqkv, A_wo)
    g = _silu(_B_ref(xn, B_w1, B_w3, B_w2))
    return x + s * g
```

```python
import copy
import re


class R:
    __slots__ = ("k", "i", "n")

    def __init__(self, k, i, n=1):
        self.k, self.i, self.n = k, i, n

    def __getitem__(self, x):
        if isinstance(x, slice):
            a = x.start or 0
            b = self.n if x.stop is None else x.stop
            assert 0 <= a < b <= self.n, (self, x)
            return R(self.k, self.i + a, b - a)
        assert 0 <= x < self.n, (str(self), x)
        return R(self.k, self.i + x, 1)

    def __str__(self):
        if self.n == 1:
            return f"{self.k}{self.i}"
        return f"{self.k}[{self.i}:{self.i + self.n - 1}]"

    __repr__ = __str__

    def regs(self):
        return {(self.k, self.i + j) for j in range(self.n)}


def v(i, n=1):
    assert 0 <= i and i + n <= 256
    return R("v", i, n)


def s(i, n=1):
    assert 0 <= i and i + n <= 102
    return R("s", i, n)


class Neg:
    def __init__(self, r):
        self.r = r

    def __str__(self):
        return f"-{self.r}"


class Abs:
    def __init__(self, r):
        self.r = r

    def __str__(self):
        return f"abs({self.r})"


SPECIAL = {"vcc": {("x", "vcc")}, "m0": {("x", "m0")}, "exec": {("x", "exec")}}


def regs_of(o):
    if isinstance(o, R):
        return o.regs()
    if isinstance(o, (Neg, Abs)):
        return regs_of(o.r)
    if isinstance(o, str) and o in SPECIAL:
        return set(SPECIAL[o])
    return set()


def fmt(o):
    if isinstance(o, int):
        return str(o) if -16 <= o <= 64 else hex(o & 0xFFFFFFFF)
    if isinstance(o, float):
        return repr(o)
    return str(o)


TRANS = ("v_exp_f32", "v_log_f32", "v_rcp_f32", "v_rsq_f32", "v_sqrt_f32", "v_sin_f32", "v_cos_f32")


class Path:
    def __init__(self):
        self.vm = []
        self.lg = []
        self.pend = {}
        self.hist = []


class Prog:
    def __init__(self):
        self.lines = []
        self.paths = [Path()]
        self.uid = 0
        self.nops = 0
        self.count = {}

    def fork(self):
        return copy.deepcopy(self.paths)

    def restore(self, st):
        self.paths = copy.deepcopy(st)

    def join(self, st):
        self.paths = self.paths + copy.deepcopy(st)

    def raw(self, text):
        self.lines.append(text)

    def comment(self, text):
        self.lines.append(f"    ; {text}")

    def label(self, name):
        self.lines.append(f"{name}:")

    def _push(self, rec):
        for p in self.paths:
            p.hist.append(rec)
            if len(p.hist) > 40:
                del p.hist[0]

    def nop(self, n):
        while n > 0:
            k = min(n, 16)
            self.lines.append(f"    s_nop {k - 1}")
            self._push(dict(cls="nop", ws=k, defs=set(), uses=set()))
            n -= k

    def _emit_wait(self, vm=None, lg=None):
        parts = []
        if vm is not None:
            vm = min(vm, 63)
            parts.append(f"vmcnt({vm})")
            for p in self.paths:
                if len(p.vm) > vm:
                    done = p.vm[: len(p.vm) - vm]
                    p.vm = p.vm[len(p.vm) - vm:]
                    ids = {u for u, _ in done}
                    p.pend = {r: x for r, x in p.pend.items() if not (x[0] == "vm" and x[1] in ids)}
        if lg is not None:
            lg = min(lg, 15)
            parts.append(f"lgkmcnt({lg})")
            for p in self.paths:
                if len(p.lg) > lg:
                    done = p.lg[: len(p.lg) - lg]
                    p.lg = p.lg[len(p.lg) - lg:]
                    ids = {u for u, _ in done}
                    p.pend = {r: x for r, x in p.pend.items() if not (x[0] == "lg" and x[1] in ids)}
        if parts:
            self.lines.append("    s_waitcnt " + " ".join(parts))
            self._push(dict(cls="wait", ws=1, defs=set(), uses=set()))

    def _need(self, which, pred):
        need = None
        for p in self.paths:
            q = p.vm if which == "vm" else p.lg
            idx = [i for i, e in enumerate(q) if pred(e)]
            if idx:
                n = len(q) - idx[-1] - 1
                need = n if need is None else min(need, n)
        return need

    def wait(self, vm=(), lg=()):
        vm = (vm,) if isinstance(vm, str) else vm
        lg = (lg,) if isinstance(lg, str) else lg
        a = self._need("vm", lambda e: "*" in vm or e[1] in vm) if vm else None
        b = self._need("lg", lambda e: "*" in lg or e[1] in lg) if lg else None
        self._emit_wait(a, b)

    def wait_all(self):
        self._emit_wait(0, 0)

    def wait_smem(self):
        self._emit_wait(None, 0)

    def _auto_wait(self, touched):
        a = b = None
        for p in self.paths:
            for r in touched:
                x = p.pend.get(r)
                if x is None:
                    continue
                q = p.vm if x[0] == "vm" else p.lg
                i = [j for j, e in enumerate(q) if e[0] == x[1]][0]
                n = len(q) - i - 1
                if x[0] == "vm":
                    a = n if a is None else min(a, n)
                else:
                    b = n if b is None else min(b, n)
        self._emit_wait(a, b)

    def _hazard(self, rec):
        need = 0
        cls, defs, uses = rec["cls"], rec["defs"], rec["uses"]
        isvalu = cls in ("valu", "trans", "dot", "perm", "dpp", "rdlane")
        ismem = cls in ("vld", "vst", "dma", "dsr", "dsw")
        vuses = {r for r in uses if r[0] == "v"}
        vdefs = {r for r in defs if r[0] == "v"}
        suses = {r for r in uses if r[0] == "s" or r == ("x", "vcc")}
        for p in self.paths:
            dist = 0
            for h in reversed(p.hist):
                hc = h["cls"]
                req = 0
                hval = hc in ("valu", "trans", "dot", "perm", "dpp", "rdlane")
                if hval:
                    hv = {r for r in h["defs"] if r[0] == "v"}
                    hs = {r for r in h["defs"] if r[0] == "s" or r == ("x", "vcc")}
                    if cls == "mfma" and hv & vuses:
                        req = max(req, 3 if hc == "dot" else 2)
                    if hc == "trans" and isvalu and cls != "trans" and hv & vuses:
                        req = max(req, 1)
                    if cls in ("perm", "dpp") and hv & vuses:
                        req = max(req, 2)
                    if cls == "rdlane" and hv & vuses:
                        req = max(req, 1)
                    if hc == "dot" and hv & (vuses | vdefs):
                        same = cls == "dot" and rec["op"] == h["op"] and not (hv & rec["ab"])
                        if not same:
                            req = max(req, 3)
                    if hs & suses and isvalu:
                        req = max(req, 2)
                    if hs & suses and cls in ("vld", "vst", "dma"):
                        req = max(req, 5)
                if hc == "mfma":
                    D, ps = h["D"], h["passes"]
                    big = {4: 8, 8: 12}[ps]
                    if cls == "mfma":
                        if D & rec["ab"]:
                            req = max(req, big)
                        if D & rec["C"]:
                            if not (rec["C"] == D and rec["passes"] == ps):
                                req = max(req, big - 2)
                        elif D & rec["D"] and not (rec["D"] == D and rec["passes"] == ps):
                            req = max(req, big - 2)
                    elif (isvalu or ismem) and D & (vuses | vdefs):
                        req = max(req, big)
                    if isvalu and h["C"] & vdefs:
                        req = max(req, {4: 3, 8: 7}[ps])
                if hc == "salu" and ("x", "m0") in h["defs"] and cls == "dma":
                    req = max(req, 1)
                if hc == "vst" and h.get("wide") and h["data"] & vdefs:
                    req = max(req, 2)
                need = max(need, req - dist)
                dist += h["ws"]
                if dist >= 20:
                    break
        if need > 0:
            self.nops += need
            self.nop(need)

    def I(self, op, *ops, mods="", tag=None):
        rec = dict(op=op, ws=1)
        defs, uses = set(), set()
        if op.startswith("v_mfma") or op.startswith("v_smfmac"):
            cls = "mfma"
            D = regs_of(ops[0])
            ab = regs_of(ops[1]) | regs_of(ops[2])
            if op.startswith("v_smfmac"):
                ab |= regs_of(ops[3])
                C = set(D)
            else:
                C = regs_of(ops[3])
            rec.update(D=D, ab=ab, C=C, passes=8 if "32x32" in op else 4)
            defs, uses = D, ab | C
        elif op.startswith("v_cmp"):
            cls = "valu"
            defs = regs_of(ops[0])
            for o in ops[1:]:
                uses |= regs_of(o)
        elif op.startswith("v_permlane"):
            cls = "perm"
            defs = regs_of(ops[0]) | regs_of(ops[1])
            uses = set(defs)
        elif op.startswith("v_readfirstlane") or op.startswith("v_readlane"):
            cls = "rdlane"
            defs, uses = regs_of(ops[0]), regs_of(ops[1])
        elif op.startswith("v_"):
            base = re.sub(r"_(e32|e64|dpp|sdwa)$", "", op)
            cls = "trans" if base in TRANS else "dot" if op.startswith("v_dot") else "dpp" if op.endswith("_dpp") else "valu"
            defs = regs_of(ops[0])
            for o in ops[1:]:
                uses |= regs_of(o)
            if op.startswith("v_fmac") or op.startswith("v_dot2c"):
                uses |= defs
            if cls == "dot":
                rec["ab"] = regs_of(ops[1]) | regs_of(ops[2])
        elif op.startswith("buffer_load"):
            if "lds" in mods.split():
                cls = "dma"
                for o in ops:
                    uses |= regs_of(o)
                uses |= {("x", "m0")}
            else:
                cls = "vld"
                defs = regs_of(ops[0])
                for o in ops[1:]:
                    uses |= regs_of(o)
        elif op.startswith("buffer_store"):
            cls = "vst"
            for o in ops:
                uses |= regs_of(o)
            rec["wide"] = op.endswith("x4") or op.endswith("x3")
            rec["data"] = regs_of(ops[0])
        elif op.startswith("ds_read"):
            cls = "dsr"
            defs = regs_of(ops[0])
            uses = regs_of(ops[1])
        elif op.startswith("ds_write"):
            cls = "dsw"
            for o in ops:
                uses |= regs_of(o)
        elif op.startswith("s_"):
            cls = "salu"
            if op.startswith("s_cmp") or op.startswith("s_cbranch") or op in (
                    "s_branch", "s_barrier", "s_setprio", "s_endpgm", "s_sleep", "s_bitcmp1_b32", "s_bitcmp0_b32"):
                for o in ops:
                    uses |= regs_of(o)
            else:
                defs = regs_of(ops[0])
                for o in ops[1:]:
                    uses |= regs_of(o)
        else:
            raise ValueError(op)
        rec.update(cls=cls, defs=defs, uses=uses)
        self._auto_wait({r for r in (defs | uses) if r[0] == "v"})
        self._hazard(rec)
        text = "    " + op + (" " + ", ".join(fmt(o) for o in ops) if ops else "") + (" " + mods if mods else "")
        self.lines.append(text)
        self.count[cls] = self.count.get(cls, 0) + 1
        self._push(rec)
        if cls in ("vld", "vst", "dma", "dsr", "dsw"):
            self.uid += 1
            which = "vm" if cls in ("vld", "vst", "dma") else "lg"
            for p in self.paths:
                (p.vm if which == "vm" else p.lg).append((self.uid, tag))
                if cls in ("vld", "dsr"):
                    for r in defs:
                        p.pend[r] = (which, self.uid)
                assert len(p.vm) <= 63, "more than 63 vector-memory operations in flight"

    def __getattr__(self, name):
        if re.match(r"^(v|s|ds|buffer)_", name):
            return lambda *a, **k: self.I(name, *a, **k)
        raise AttributeError(name)

    def text(self):
        return "\n".join(self.lines) + "\n"
```

```python
import struct
import sys

from asmdsl import Abs, Neg, Prog, s, v

NAME = "recurrent_scan__softmax_full_mha__glu_gated_swiglu__prompt_kernel"


def f32(x):
    return struct.unpack("<I", struct.pack("<f", x))[0]


WS_E = 0
WS_FQ = 0x1000
WS_FH = 0x2000
WS_FO = 0x4000
WS_Q = 0x10000
WS_K = WS_Q + 0x200000
WS_V = WS_K + 0x200000
WS_O = WS_V + 0x200000
WS_H = WS_O + 0x200000
WS_STAMP = WS_H + 64 * 112 * 1024
WS_END = WS_STAMP + 256 * 8 * 128

LDS_BYTES = 163840
L_XST = 0
L_WQ = 65536
UPST = 14464
UP_U = 7296
L_DUMMY = 57856
UP_BASE = ([0 + UPST * i for i in range(4)] + [65536 + UPST * i for i in range(6)]
           + [0 + UPST * i for i in range(4)] + [65536 + UPST * i for i in range(2)])
CH = 16512
CH_BASE = [94464 + CH * i for i in range(4)] + [CH * i for i in range(4)]
SL_F = [66048 + 8192 * i for i in range(3)]
SL_P = [94464 + 8192 * i for i in range(8)]
SL_R = [8192 * i for i in range(8)]
W2_SLOT = SL_F + SL_P + SL_R + SL_F + SL_P[:6]
L_WO = 0
L_RED = 66048
L_EX = L_RED + 65536

LOG2E = 1.4426950408889634
QSCALE = 0.25 * LOG2E
M_OFF = 100.0
SPIN_MAX = 1 << 18

sKARG = s(0, 2)
sG = s(2)
pX, pWQ, pWO, pW1, pW3, pW2, pOUT, pWS = s(4, 2), s(6, 2), s(8, 2), s(12, 2), s(14, 2), s(16, 2), s(18, 2), s(22, 2)
rX, rWQ, rWO, rW1, rW3, rW2, rOUT, rWS = (s(24 + 4 * i, 4) for i in range(8))
sW, sRB, sCB, sHEAD, sQB, sEP = s(56), s(57), s(58), s(59), s(60), s(63)
sR3, sC3 = sHEAD, sQB
sT = [s(64 + i) for i in range(8)]
sUPm0, sUPmask, sUPoff = s(72), s(73), s(74)
sW1024, sW1040, sKV = s(75), s(76), s(77)
sSLOW, sSPIN = s(78), s(79)
sMASK, sONES = s(61), s(62)
sV2 = s(80, 2)
STAMP_REGS = [s(84 + i) for i in range(14)] + [s(4 + i) for i in range(16)]


class Gen:
    def __init__(self, opt):
        self.o = opt
        self.p = Prog()
        self.nstamp = 0
        self.nlab = 0

    def stamp(self, name):
        if not self.o.get("stamp"):
            return
        p = self.p
        i = self.o["stamp_names"].setdefault(name, len(self.o["stamp_names"]))
        p.raw("    s_memtime s[100:101]")
        p.wait_smem()
        p.s_mov_b32(STAMP_REGS[i], s(100))

    def srd(self, r, ptr, nbytes):
        p = self.p
        p.s_mov_b32(r[0], ptr[0])
        p.s_mov_b32(r[1], ptr[1])
        p.s_mov_b32(r[2], nbytes)
        p.s_mov_b32(r[3], 0x00020000)

    def lab(self, base):
        self.nlab += 1
        return f"L_{base}_{self.nlab}"

    def barrier(self):
        self.p.wait(lg="*")
        self.p.s_barrier()

    def dma(self, voff, srd, soff, m0val, tag, m0add=None, sc1=False):
        p = self.p
        if m0add is None:
            p.s_mov_b32("m0", m0val)
        else:
            p.s_add_u32("m0", m0add, m0val)
        p.buffer_load_dwordx4(voff, srd, soff, mods="offen sc1 lds" if sc1 else "offen lds", tag=tag)

    def poll_issue(self, dst, vaddr, soff):
        self.p.buffer_load_dword(dst, vaddr, rWS, soff, mods="offen sc1")

    def poll_check(self, dst, vaddr, soff):
        p = self.p
        ok, again = self.lab("ok"), self.lab("poll")
        p.v_cmp_ne_u32("vcc", sEP, dst)
        p.s_cbranch_vccz(ok)
        p.s_mov_b32(sSPIN, SPIN_MAX)
        p.label(again)
        p.raw(f"    buffer_load_dword {dst}, {vaddr}, {rWS}, {soff} offen sc1")
        p.raw("    s_waitcnt vmcnt(0)")
        p.raw(f"    v_cmp_ne_u32 vcc, {sEP}, {dst}")
        p.raw(f"    s_cbranch_vccz {ok}")
        p.raw(f"    s_sub_u32 {sSPIN}, {sSPIN}, 1")
        p.raw(f"    s_cmp_lg_u32 {sSPIN}, 0")
        p.raw(f"    s_cbranch_scc1 {again}")
        p.label(ok)

    def flag_store(self, vtmp, vtmp2, soff):
        p = self.p
        p.v_mov_b32(vtmp, sEP)
        p.v_mov_b32(vtmp2, 0)
        p.s_mov_b64("exec", 1)
        p.buffer_store_dword(vtmp, vtmp2, rWS, soff, mods="offen sc1", tag="flag")
        p.s_mov_b64("exec", -1)

    def gemm_stream(self, n, read, mfma, depth, bars=None, extra=None):
        p = self.p
        bars = bars or {}
        passed = set()
        st = {"nxt": 0}

        def issue(i):
            while st["nxt"] < n and st["nxt"] <= i + depth and not any(
                    f <= st["nxt"] and f not in passed for f in bars):
                read(st["nxt"])
                st["nxt"] += 1

        for i in range(-depth, n):
            for f, (lead, pre, post) in sorted(bars.items()):
                if f not in passed and i == f - lead:
                    assert st["nxt"] == min(f, n), (st["nxt"], f)
                    if pre:
                        pre()
                    self.barrier()
                    passed.add(f)
                    issue(i)
                    if post:
                        post()
            if i >= 0:
                mfma(i)
            issue(i)
            if extra and i >= 0:
                extra(i)

    def setup(self):
        p = self.p
        p.s_cmp_ge_u32(sG, 256)
        p.s_cbranch_scc1("L_exit")
        if self.o.get("stamp"):
            p.raw("    s_memrealtime s[98:99]")
        p.raw("    s_load_dwordx16 s[4:19], s[0:1], 0")
        p.raw("    s_load_dwordx4 s[20:23], s[0:1], 64")
        self.vL = v(0)
        p.v_lshrrev_b32(v(1), 6, v(0))
        p.v_and_b32(v(0), 63, v(0))
        p.v_readfirstlane_b32(sW, v(1))
        t0, t1, t2 = sT[0], sT[1], sT[2]
        p.s_and_b32(t0, sG, 7)
        p.s_lshr_b32(t1, sG, 3)
        p.s_and_b32(sQB, t1, 7)
        p.s_lshr_b32(t1, t1, 3)
        p.s_lshl_b32(t2, t0, 2)
        p.s_add_u32(sHEAD, t2, t1)
        p.s_and_b32(t2, t0, 1)
        p.s_lshl_b32(t2, t2, 3)
        p.s_add_u32(sRB, t2, sQB)
        p.s_lshr_b32(t2, t0, 1)
        p.s_lshl_b32(t2, t2, 2)
        p.s_add_u32(sCB, t2, t1)
        vXa = v(1)
        p.v_lshrrev_b32(v(2), 2, self.vL)
        p.v_and_b32(v(3), 3, self.vL)
        p.v_lshlrev_b32(v(2), 10, v(2))
        p.v_lshl_add_u32(vXa, v(3), 4, v(2))
        p.s_lshl_b32(t0, sRB, 17)
        p.s_lshl_b32(t1, sW, 14)
        p.s_add_u32(t0, t0, t1)
        p.s_mov_b32(sMASK, 0xFFFF0000)
        p.s_mov_b32(sONES, 0x3F803F80)
        p.s_lshl_b32(sW1024, sW, 10)
        p.s_mul_i32(sW1040, sW, 1040)
        p.wait_smem()
        self.stamp("start")
        self.srd(rX, pX, 2048 * 1024)
        self.X = v(64, 64)
        for i in range(16):
            p.buffer_load_dwordx4(self.X[4 * i:4 * i + 4], vXa, rX, t0, mods=f"offen offset:{64 * i}")
        p.raw(f"    s_load_dword {sEP}, {pWS}, {WS_E}")
        self.srd(rWQ, pWQ, 512 * 3072)
        p.s_mov_b32(t2, 43691)
        pat = [v(4), v(5), v(6)]
        for q in range(3):
            p.v_add_u32(v(2), 64 * q, self.vL)
            p.v_mul_u32_u24(v(3), t2, v(2))
            p.v_lshrrev_b32(v(3), 19, v(3))
            p.v_mul_u32_u24(v(7), 12, v(3))
            p.v_sub_u32(v(2), v(2), v(7))
            p.v_mul_u32_u24(v(3), 3072, v(3))
            p.v_lshrrev_b32(v(7), 2, v(2))
            p.v_lshl_add_u32(v(3), v(7), 10, v(3))
            p.v_and_b32(v(2), 3, v(2))
            p.v_lshl_add_u32(pat[q], v(2), 4, v(3))
        p.s_mul_i32(t0, sW, 49152)
        p.s_lshl_b32(t1, sCB, 6)
        p.s_add_u32(t0, t0, t1)
        p.s_mul_i32(t1, sW, 3072)
        for kk in range(4):
            for q in range(3):
                self.dma(pat[q], rWQ, t0, L_WQ + kk * 8 * 3072 + q * 1024, "wq", m0add=t1)
            if kk < 3:
                p.s_add_u32(t0, t0, 8 * 49152)
        self.srd(rW1, pW1, 512 * 3584)
        self.srd(rW3, pW3, 512 * 3584)
        self.srd(rWS, pWS, WS_END)
        self.srd(rW2, pW2, 1792 * 1024)
        self.srd(rWO, pWO, 512 * 1024)
        self.srd(rOUT, pOUT, 2048 * 1024)
        p.wait_smem()
        p.s_mul_i32(sEP, sEP, 0x9E3779B1)
        p.s_add_u32(sEP, sEP, 0x7F4A7C15)

    def layernorm(self):
        p = self.p
        X, L = self.X, self.vL
        sa, sb, qa, qb = v(8), v(9), v(10), v(11)
        vOne = v(12)
        vWr = v(13)
        self.vXe, self.vXo = v(14), v(15)
        t0 = sT[0]
        p.v_and_b32(v(2), 3, L)
        p.v_lshrrev_b32(v(3), 2, L)
        p.s_and_b32(t0, sW, 1)
        p.s_lshl_b32(t0, t0, 4)
        p.v_add_u32(v(3), t0, v(3))
        p.v_lshlrev_b32(v(7), 1, v(2))
        p.v_xor_b32(v(3), v(3), v(7))
        p.v_lshlrev_b32(v(3), 4, v(3))
        p.v_lshrrev_b32(v(7), 1, v(2))
        p.v_lshl_add_u32(v(3), v(7), 12, v(3))
        p.v_and_b32(v(7), 1, v(2))
        p.v_lshl_add_u32(v(3), v(7), 9, v(3))
        p.s_lshr_b32(t0, sW, 1)
        p.s_lshl_b32(t0, t0, 10)
        p.v_add_u32(vWr, t0, v(3))
        p.v_and_b32(v(2), 31, L)
        p.v_lshrrev_b32(v(3), 5, L)
        p.v_lshlrev_b32(v(7), 1, v(3))
        p.v_xor_b32(v(2), v(2), v(7))
        p.v_lshlrev_b32(v(2), 4, v(2))
        p.v_lshl_add_u32(v(2), v(3), 9, v(2))
        p.s_and_b32(t0, sW, 3)
        p.s_lshl_b32(t0, t0, 10)
        p.v_add_u32(self.vXe, t0, v(2))
        p.v_xor_b32(self.vXo, 64, self.vXe)
        p.v_mov_b32(vOne, sONES)
        for r in (sa, sb, qa, qb):
            p.v_mov_b32(r, 0)
        for i in range(32):
            a, b = X[2 * i], X[2 * i + 1]
            p.v_dot2_f32_bf16(sa, a, vOne, sa)
            p.v_dot2_f32_bf16(qa, a, a, qa)
            p.v_dot2_f32_bf16(sb, b, vOne, sb)
            p.v_dot2_f32_bf16(qb, b, b, qb)
        self.stamp("x_in")
        p.v_add_f32(sa, sa, sb)
        p.v_add_f32(qa, qa, qb)
        dp = "row_mask:0xf bank_mask:0xf"
        p.v_add_f32_dpp(sb, sa, sa, mods="quad_perm:[1,0,3,2] " + dp)
        p.v_add_f32_dpp(qb, qa, qa, mods="quad_perm:[1,0,3,2] " + dp)
        p.v_add_f32_dpp(sa, sb, sb, mods="quad_perm:[2,3,0,1] " + dp)
        p.v_add_f32_dpp(qa, qb, qb, mods="quad_perm:[2,3,0,1] " + dp)
        p.v_mul_f32(sa, f32(1.0 / 512), sa)
        p.v_mul_f32(qa, f32(1.0 / 512), qa)
        p.v_fma_f32(qa, Neg(sa), sa, qa)
        p.v_max_f32(qa, 0, qa)
        p.v_add_f32(qa, f32(1e-5), qa)
        rstd, nm = qb, sb
        p.v_rsq_f32(rstd, qa)
        p.v_mul_f32(nm, sa, rstd)
        tmp = [v(16 + i) for i in range(8)]

        def norm(i):
            g = X[4 * i:4 * i + 4]
            for j in range(4):
                p.v_lshlrev_b32(tmp[2 * j], 16, g[j])
                p.v_and_b32(tmp[2 * j + 1], sMASK, g[j])
            for j in range(8):
                p.v_fma_f32(tmp[j], tmp[j], rstd, Neg(nm))
            for j in range(4):
                p.v_cvt_pk_bf16_f32(g[j], tmp[2 * j], tmp[2 * j + 1])

        def wr(i):
            p.ds_write_b128(vWr, X[4 * i:4 * i + 4], mods=f"offset:{L_XST + (i % 8) * 8192}")

        self.XF = v(128, 128)
        for i in range(8):
            norm(i)
            wr(i)
        self.barrier()
        for i in range(8, 16):
            self.xread(2 * (i - 8))
            self.xread(2 * (i - 8) + 1)
            norm(i)
        self.barrier()
        for i in range(8, 16):
            wr(i)
        p.wait(vm="wq")
        self.barrier()
        self.stamp("ln_done")

    def xread(self, ks):
        a = self.vXo if ks & 1 else self.vXe
        self.p.ds_read_b128(self.XF[4 * ks:4 * ks + 4], a, mods=f"offset:{L_XST + (ks % 16) * 4096}")

    def gemm1_setup(self):
        p = self.p
        L = self.vL
        t0, t1 = sT[0], sT[1]
        mh, h, r, c = v(16), v(17), v(18), v(19)
        p.v_bfe_u32(mh, L, 4, 1)
        p.v_lshrrev_b32(h, 5, L)
        p.v_bfe_u32(r, L, 2, 2)
        p.v_and_b32(c, 3, L)
        p.v_lshl_add_u32(v(20), h, 3, r)
        self.vWQ = [v(4), v(5)]
        p.v_mul_u32_u24(v(21), 192, v(20))
        p.v_lshl_add_u32(v(21), mh, 5, v(21))
        p.v_lshl_add_u32(v(21), c, 3, v(21))
        p.v_add_u32(self.vWQ[0], L_WQ, v(21))
        p.v_add_u32(self.vWQ[1], L_WQ + 49152, v(21))
        self.vUP = [v(6), v(7), v(8)]
        p.v_mul_u32_u24(v(21), 224, v(20))
        p.v_mul_u32_u24(v(22), UP_U, mh)
        p.v_add_u32(v(21), v(21), v(22))
        p.v_lshl_add_u32(self.vUP[0], c, 3, v(21))
        p.v_add_u32(self.vUP[1], 65536, self.vUP[0])
        p.v_add_u32(self.vUP[2], 131072, self.vUP[0])
        self.vUD = v(9)
        p.s_lshl_b32(t0, sW, 6)
        p.v_add_u32(v(20), t0, L)
        p.v_mul_u32_u24(v(21), 4682, v(20))
        p.v_lshrrev_b32(v(21), 16, v(21))
        p.v_mul_u32_u24(v(22), 14, v(21))
        p.v_sub_u32(v(20), v(20), v(22))
        p.v_mul_u32_u24(v(21), 3584, v(21))
        p.v_lshl_add_u32(v(20), v(20), 4, v(21))
        p.s_cmp_eq_u32(sW, 7)
        p.s_cselect_b32(t0, 0x40000000, 0)
        p.s_cselect_b32(sUPm0, L_DUMMY, sW1024)
        p.s_cselect_b32(sUPmask, 0, -1)
        p.v_add_u32(self.vUD, t0, v(20))
        p.s_mul_i32(sUPoff, sCB, 224)
        self.vL16, self.vKst, self.vVst, self.vFl = v(10), v(11), v(12), v(13)
        p.v_lshlrev_b32(self.vL16, 4, L)
        p.v_and_b32(v(20), 0x33, L)
        p.v_bfe_u32(v(21), L, 2, 1)
        p.v_lshl_add_u32(v(20), v(21), 3, v(20))
        p.v_bfe_u32(v(21), L, 3, 1)
        p.v_lshl_add_u32(v(20), v(21), 2, v(20))
        p.v_lshlrev_b32(self.vKst, 4, v(20))
        p.v_and_b32(v(20), 15, L)
        p.v_lshlrev_b32(self.vFl, 2, v(20))
        p.v_lshl_add_u32(v(20), h, 4, v(20))
        p.v_lshlrev_b32(v(20), 4, v(20))
        p.v_lshl_add_u32(self.vVst, mh, 16, v(20))
        p.s_lshl_b32(t0, sHEAD, 16)
        p.s_add_u32(sKV, t0, sW1024)

    def up_dma(self, stage):
        p = self.p
        t0, t1 = sT[0], sT[1]
        p.s_add_u32(t0, sUPoff, stage * 32 * 3584)
        for srd, off in ((rW1, 0), (rW3, UP_U)):
            p.s_and_b32(t1, sUPmask, UP_BASE[stage] + off)
            self.dma(self.vUD, srd, t0, t1, f"up{stage}", m0add=sUPm0)

    def kv_dma(self, c):
        p = self.p
        t0 = sT[0]
        p.s_add_u32(t0, sKV, WS_K + c * 8192)
        self.dma(self.vL16, rWS, t0, CH_BASE[c], f"kv{c}", m0add=sW1024, sc1=True)
        p.s_add_u32(t0, sKV, WS_V + c * 8192)
        self.dma(self.vL16, rWS, t0, CH_BASE[c] + 8192, f"kv{c}", m0add=sW1040, sc1=True)
        p.s_add_u32(t0, sW1040, CH_BASE[c] + 8192 + 1024)
        p.v_mov_b32(v(31), t0)
        p.s_mov_b64("exec", 1)
        p.ds_write_b128(v(31), self.vOnes4)
        p.s_mov_b64("exec", -1)

    def gemm1(self, hf):
        p = self.p
        XF = self.XF
        ring = [v(32 + 4 * i, 4) for i in range(8)]
        acc = [v(64 + 16 * i, 16) for i in range(4)]
        t0, t1 = sT[0], sT[1]
        MF = "v_mfma_f32_32x32x16_bf16"

        tiles = [0, 1] if hf == 0 else [2]
        nt = len(tiles)
        depth = 5 if hf == 0 else 4

        def rd(i):
            ks, T = i // nt, tiles[i % nt]
            for e in range(2):
                off = (ks % 16) * 3072 + e * 768 + T * 64
                p.ds_read_b64_tr_b16(ring[i % 8][2 * e:2 * e + 2], self.vWQ[ks // 16], mods=f"offset:{off}")

        def mm(i):
            ks, k = i // nt, i % nt
            x, w = XF[4 * ks:4 * ks + 4], ring[i % 8]
            a, b = (w, x) if hf == 0 else (x, w)
            p.I(MF, acc[k], a, b, 0 if ks == 0 else acc[k])

        def ex(i):
            ks, k = i // nt, i % nt
            if k == 0 and ks < 8:
                self.xread(16 + 2 * ks)
                self.xread(17 + 2 * ks)

        def post_mid():
            for st in range(4):
                self.up_dma(st)

        self.gemm_stream(32 * nt, rd, mm, depth, {12 * nt: (2, None, post_mid)}, ex)
        p.wait(vm=["up0", "up1", "up2", "up3"])
        self.barrier()
        self.stamp("qkv_mm")
        p.s_lshl_b32(t0, sRB, 2)
        p.s_and_b32(t1, sW, 3)
        p.s_add_u32(sT[3], t0, t1)
        p.s_lshl_b32(t0, sT[3], 10)
        p.s_lshl_b32(t1, sCB, 17)
        p.s_add_u32(sT[2], t0, t1)
        pk = v(16, 8)
        if hf == 0:
            p.s_mov_b32(t1, f32(QSCALE))
            for i in range(8):
                p.v_cvt_pk_bf16_f32(pk[i], acc[1][2 * i], acc[1][2 * i + 1])
            for hd in range(2):
                p.s_add_u32(t0, sT[2], WS_K + hd * 65536)
                p.buffer_store_dwordx4(pk[4 * hd:4 * hd + 4], self.vKst, rWS, t0, mods="offen sc1", tag="qkv")
            for i in range(16):
                p.v_mul_f32(acc[0][i], t1, acc[0][i])
            pq = v(24, 8)
            for i in range(8):
                p.v_cvt_pk_bf16_f32(pq[i], acc[0][2 * i], acc[0][2 * i + 1])
            for hd in range(2):
                p.s_add_u32(t0, sT[2], WS_Q + hd * 65536)
                p.buffer_store_dwordx4(pq[4 * hd:4 * hd + 4], self.vL16, rWS, t0, mods="offen sc1", tag="qkv")
        else:
            for i in range(8):
                p.v_cvt_pk_bf16_f32(pk[i], acc[0][2 * i], acc[0][2 * i + 1])
            p.s_add_u32(t0, sT[2], WS_V)
            for sx in range(2):
                p.buffer_store_dwordx4(pk[4 * sx:4 * sx + 4], self.vVst, rWS, t0,
                                       mods=f"offen offset:{512 * sx} sc1", tag="qkv")
        for st in range(4, 10):
            self.up_dma(st)
        self.vOnes4 = v(24, 4)
        for i in range(4):
            p.v_mov_b32(self.vOnes4[i], sONES)
        self.stamp("qkv_st")

        tiles = [0, 1, 2] if hf == 0 else [3, 4, 5, 6]
        nt = len(tiles)
        vP = v(28)

        def rd(i):
            ks, T = i // nt, tiles[i % nt]
            for e in range(2):
                a = UP_BASE[ks >> 1] + (ks & 1) * 3584 + e * 896 + T * 32
                p.ds_read_b64_tr_b16(ring[i % 8][2 * e:2 * e + 2], self.vUP[a >> 16], mods=f"offset:{a & 0xFFFF}")

        def mm(i):
            ks, k = i // nt, i % nt
            p.I(MF, acc[k], ring[i % 8], XF[4 * ks:4 * ks + 4], 0 if ks == 0 else acc[k])

        def w(*tags):
            return lambda: p.wait(vm=list(tags))

        def post1():
            for st in range(10, 14):
                self.up_dma(st)

        def post2():
            for st in range(14, 16):
                self.up_dma(st)
            if hf == 0:
                skip = self.lab("nf")
                p.s_cmp_lg_u32(sW, 0)
                p.s_cbranch_scc1(skip)
                st0 = p.fork()
                p.s_lshl_b32(t0, sCB, 8)
                p.s_lshl_b32(t1, sRB, 2)
                p.s_add_u32(t0, t0, t1)
                p.s_add_u32(t0, t0, WS_FQ)
                self.flag_store(v(29), v(30), t0)
                p.label(skip)
                p.join(st0)
            self.stamp("q_flag")

        def fq_off():
            p.s_lshr_b32(sT[4], sHEAD, 1)
            p.s_lshl_b32(sT[4], sT[4], 8)
            p.s_add_u32(sT[4], sT[4], WS_FQ)

        def post3():
            self.stamp("b3")
            self.poll_check(vP, self.vFl, sT[4])
            self.stamp("q_seen")
            for c in range(4):
                self.kv_dma(c)

        def post4():
            for c in range(4, 7):
                self.kv_dma(c)
            p.s_lshl_b32(t0, sQB, 13)
            p.s_add_u32(t0, t0, sKV)
            p.s_add_u32(t0, t0, WS_Q)
            p.buffer_load_dwordx4(self.vQ, self.vL16, rWS, t0, mods="offen sc1")

        def ex(i):
            if i == 18 * nt:
                fq_off()
                self.poll_issue(vP, self.vFl, sT[4])

        self.vQ = v(128, 4)
        lead = 2
        bars = {8 * nt: (lead, w("up4", "up5"), post1),
                12 * nt: (lead, w("up6", "up7", "up8", "up9", "qkv"), post2),
                20 * nt: (lead, w("up10", "up11", "up12", "up13"), post3),
                28 * nt: (lead, w("up14", "up15"), post4)}
        self.gemm_stream(32 * nt, rd, mm, 6, bars, ex)
        self.stamp("up_mm")

        def last_barrier():
            p.wait(vm=["kv0", "kv1", "kv2", "kv3"])
            self.barrier()
            self.kv_dma(7)
            for st in range(3):
                self.w2_dma(st)

        self.w2_setup()
        if hf == 1:
            last_barrier()
        p.s_mul_i32(t0, sT[3], 112)
        p.s_mul_i32(t1, sCB, 7)
        p.s_add_u32(t0, t0, t1)
        p.s_lshl_b32(sT[2], t0, 10)
        p.s_mov_b32(sT[5], f32(-LOG2E))
        tmp = [v(32 + i) for i in range(8)]
        for k, T in enumerate(tiles):
            g, u = acc[k][0:8], acc[k][8:16]
            for i in range(8):
                p.v_mul_f32(tmp[i], sT[5], g[i])
            for i in range(8):
                p.v_exp_f32(tmp[i], tmp[i])
            for i in range(8):
                p.v_mul_f32(u[i], g[i], u[i])
            for i in range(8):
                p.v_add_f32(tmp[i], 1.0, tmp[i])
            for i in range(8):
                p.v_rcp_f32(tmp[i], tmp[i])
            for i in range(8):
                p.v_mul_f32(u[i], u[i], tmp[i])
            for i in range(4):
                p.v_cvt_pk_bf16_f32(g[i], u[2 * i], u[2 * i + 1])
            p.s_add_u32(t0, sT[2], WS_H + T * 1024)
            p.buffer_store_dwordx4(g[0:4], self.vL16, rWS, t0, mods="offen sc1", tag="h")
        if hf == 0:
            last_barrier()
        self.stamp("up_done")

    def w2_setup(self):
        p = self.p
        L = self.vL
        t0, t1 = sT[0], sT[1]
        self.vW2D = v(9)
        a, b = v(20), v(21)
        p.v_lshrrev_b32(a, 3, L)
        p.v_bfe_u32(b, L, 4, 1)
        p.v_lshlrev_b32(b, 2, b)
        p.v_and_b32(v(22), 7, L)
        p.v_xor_b32(b, b, v(22))
        p.v_lshlrev_b32(b, 4, b)
        p.v_lshl_add_u32(a, a, 10, b)
        p.s_lshr_b32(t0, sW, 1)
        p.s_mul_i32(t0, t0, 28 * 16 * 1024)
        p.s_and_b32(t1, sW, 1)
        p.s_lshl_b32(t1, t1, 13)
        p.s_add_u32(t0, t0, t1)
        p.s_lshl_b32(t1, sC3, 7)
        p.s_add_u32(t0, t0, t1)
        p.v_add_u32(self.vW2D, t0, a)

    def w2_dma(self, st):
        p = self.p
        p.s_mov_b32(sT[0], st * 16384)
        self.dma(self.vW2D, rW2, sT[0], W2_SLOT[st], f"w2_{st}", m0add=sW1024)

    def attention(self):
        p = self.p
        L = self.vL
        t0, t1 = sT[0], sT[1]
        S = [v(16, 16), v(32, 16)]
        O, NM = v(48, 16), v(64, 16)
        Q = self.vQ
        K, V0, V1, XA, XB = v(80, 4), v(84, 4), v(88, 4), v(92, 4), v(96, 4)
        vIdx = v(14)
        vK, vV0, vV1 = v(4), v(5), v(6)
        self.H = v(144, 112)
        self.att = dict(S=S, O=O, NM=NM, Q=Q, K=K, V0=V0, V1=V1, vIdx=vIdx)
        MF, SM = "v_mfma_f32_32x32x16_bf16", "v_smfmac_f32_32x32x32_bf16"
        base = {"cur": None}

        p.v_and_b32(v(7), 15, L)
        p.v_lshrrev_b32(v(8), 5, L)
        p.v_lshl_add_u32(v(7), v(8), 4, v(7))
        p.v_lshlrev_b32(v(7), 4, v(7))
        p.v_add_u32(v(8), 512, v(7))
        p.v_and_b32(v(15), 31, L)
        p.v_cmp_eq_u32("vcc", 16, v(15))
        p.v_mov_b32(v(15), 1024)
        p.v_cndmask_b32(vV0, v(7), v(15), "vcc")
        p.v_cndmask_b32(vV1, v(8), v(15), "vcc")
        p.v_mov_b32(vK, self.vL16)
        p.v_mov_b32(vIdx, 0xDDDD)
        win = {id(vK): 0, id(vV0): 0, id(vV1): 0}

        def rd(dst, areg, addr):
            w = win[id(areg)]
            if not (w <= addr < w + 65536):
                nw = addr & ~0xFF
                p.v_add_u32(areg, (nw - w) & 0xFFFFFFFF, areg)
                win[id(areg)] = w = nw
            p.ds_read_b128(dst, areg, mods=f"offset:{addr - w}")

        def rdK(dst, b):
            rd(dst, vK, CH_BASE[b >> 3] + (b & 7) * 1024)

        def rdV(dst, b, sx):
            rd(dst, vV1 if sx else vV0, CH_BASE[b >> 3] + 8192 + (b & 7) * 1040)

        rdK(XA, 0)
        rdK(K, 1)
        rdV(V0, 0, 0)
        p.I(MF, S[0], XA, Q, 0)
        p.I(MF, S[1], K, Q, 0)
        for i in range(16):
            p.v_mov_b32(O[i], 0)
        m = v(7)
        p.v_max3_f32(m, S[0][0], S[0][1], S[0][2])
        for i in range(3, 15, 2):
            p.v_max3_f32(m, S[0][i], S[0][i + 1], m)
        p.v_max3_f32(m, S[0][15], S[1][0], m)
        for i in range(1, 15, 2):
            p.v_max3_f32(m, S[1][i], S[1][i + 1], m)
        p.v_max_f32(m, S[1][15], m)
        p.v_mov_b32(v(8), m)
        p.v_permlane32_swap_b32(m, v(8))
        p.v_max_f32(m, m, v(8))
        p.v_sub_f32(NM[0], f32(-M_OFF), m)
        for i in range(1, 16):
            p.v_mov_b32(NM[i], NM[0])
        p.I(MF, S[0], XA, Q, NM)
        p.s_mov_b32(sSLOW, 0)
        self.stamp("att_start")

        vP = v(15)
        hq = []

        def h_loads():
            def first():
                p.s_lshl_b32(t0, sR3, 1)
                p.s_and_b32(t1, sW, 1)
                p.s_add_u32(t0, t0, t1)
                p.s_mul_i32(t0, t0, 112)
                p.s_lshr_b32(t1, sW, 1)
                p.s_mul_i32(t1, t1, 28)
                p.s_add_u32(t0, t0, t1)
                p.s_lshl_b32(t0, t0, 10)
                p.s_add_u32(sT[5], t0, WS_H)
            for st in range(28):
                def one(st=st):
                    if st == 0:
                        first()
                    elif st % 4 == 0:
                        p.s_add_u32(sT[5], sT[5], 4096)
                    p.buffer_load_dwordx4(self.H[4 * st:4 * st + 4], self.vL16, rWS, sT[5],
                                          mods=f"offen offset:{(st % 4) * 1024} sc1")
                hq.append(one)

        h_loads()
        prio = self.o.get("prio", {})
        MID = 30
        for b in range(64):
            cur, oth = S[b & 1], S[(b + 1) & 1]
            if b in prio:
                p.s_setprio(prio[b])

            def e(i, j):
                for x in range(i, j):
                    p.v_exp_f32(cur[x], cur[x])
            v0r = XA if b == MID + 1 else V0
            v1p = XB if b == MID + 2 else V1
            e(0, 2)
            if b > 0:
                p.I(SM, O, v1p, oth[8:16], vIdx)
            if b != MID + 1:
                rdV(V1, b, 1)
            if b == MID:
                rdV(XA, b + 1, 0)
                rdV(XB, b + 1, 1)
            e(2, 5)
            if b < 63:
                p.I(MF, oth, K, Q, NM)
            if b < 62 and b != MID:
                rdK(K, b + 2)
            if b == 40:
                p.s_lshr_b32(sT[4], sR3, 1)
                p.s_lshl_b32(sT[4], sT[4], 8)
                p.s_add_u32(sT[4], sT[4], WS_FH)
                self.poll_issue(vP, self.vFl, sT[4])
            if b == 44:
                self.poll_check(vP, self.vFl, sT[4])
            if b >= 44 and hq:
                hq.pop(0)()
            e(5, 10)
            p.I(SM, O, v0r, cur[0:8], vIdx)
            if b == MID:
                p.wait(vm=["kv4", "kv5", "kv6", "kv7", "h"])
                self.barrier()
                rdK(K, b + 2)
                skip = self.lab("nf")
                p.s_cmp_lg_u32(sW, 0)
                p.s_cbranch_scc1(skip)
                st0 = p.fork()
                p.s_lshl_b32(t0, sRB, 8)
                p.s_lshl_b32(t1, sCB, 2)
                p.s_add_u32(t0, t0, t1)
                p.s_add_u32(t0, t0, WS_FH)
                self.flag_store(v(7), v(8), t0)
                p.label(skip)
                p.join(st0)
                self.stamp("att_mid")
            elif b < 63:
                rdV(V0, b + 1, 0)
            if MID < b <= MID + 8:
                self.w2_dma(3 + b - MID - 1)
            if b >= 44 and hq:
                hq.pop(0)()
            e(10, 16)
        p.I(SM, O, V1, S[1][8:16], vIdx)
        assert not hq
        p.s_setprio(0)
        self.stamp("att_loop")

        p.label("L_att_fin")
        p.nop(12)
        l, a, r = v(7), v(8), v(15)
        p.v_mov_b32(l, O[8])
        p.v_mov_b32(r, O[8])
        p.v_add_f32(a, Abs(O[0]), Abs(O[1]))
        p.v_permlane32_swap_b32(l, r)
        for i in range(2, 8):
            p.v_add_f32(a, Abs(O[i]), a)
        p.v_rcp_f32(r, l)
        p.s_mov_b32(t0, f32(2.0 ** 120))
        p.s_mov_b32(t1, 0x7F800000)
        p.v_cmp_nlt_f32(sV2, l, t0)
        p.v_cmp_nlt_f32("vcc", a, t1)
        for i in range(8):
            p.v_mul_f32(O[i], O[i], r)
        p.s_or_b64("vcc", "vcc", sV2)
        p.s_cmp_eq_u32(sSLOW, 0)
        p.s_cselect_b64(sV2, "vcc", 0)
        p.s_cmp_lg_u64(sV2, 0)
        p.s_cbranch_scc1("L_slow")
        for i in range(4):
            p.v_cvt_pk_bf16_f32(O[i], O[2 * i], O[2 * i + 1])
        p.s_lshl_b32(t0, sQB, 3)
        p.s_add_u32(sT[3], t0, sW)
        p.s_lshl_b32(t0, sT[3], 5)
        p.s_add_u32(sT[3], t0, sHEAD)
        p.s_lshl_b32(t0, sT[3], 10)
        p.s_add_u32(t0, t0, WS_O)
        p.buffer_store_dwordx4(O[0:4], self.vL16, rWS, t0, mods="offen sc1", tag="o")
        p.s_lshl_b32(sT[3], sT[3], 2)
        p.s_add_u32(sT[3], sT[3], WS_FO)

    def slow_path(self):
        p = self.p
        A = self.att
        S, O, NM, Q, K, V0, V1, vIdx = A["S"][0], A["O"], A["NM"], A["Q"], A["K"], A["V0"], A["V1"], A["vIdx"]
        t0, t1, t2, cnt = sT[0], sT[1], sT[2], sT[3]
        MF, SM = "v_mfma_f32_32x32x16_bf16", "v_smfmac_f32_32x32x32_bf16"
        p.label("L_slow")
        p.wait_all()
        p.nop(16)
        m = v(7)
        p.v_mov_b32(m, 0xFF800000)
        p.s_lshl_b32(t2, sHEAD, 16)
        p.s_add_u32(t0, t2, WS_K)
        p.s_mov_b32(cnt, 64)
        p.label("L_slow1")
        p.buffer_load_dwordx4(K, self.vL16, rWS, t0, mods="offen sc1")
        p.I(MF, S, K, Q, 0)
        for i in range(0, 16, 2):
            p.v_max3_f32(m, S[i], S[i + 1], m)
        p.s_add_u32(t0, t0, 1024)
        p.s_sub_u32(cnt, cnt, 1)
        p.s_cmp_lg_u32(cnt, 0)
        p.s_cbranch_scc1("L_slow1")
        p.v_mov_b32(v(8), m)
        p.v_permlane32_swap_b32(m, v(8))
        p.v_max_f32(m, m, v(8))
        for i in range(16):
            p.v_sub_f32(NM[i], 0, m)
            p.v_mov_b32(O[i], 0)
        for i in range(4):
            p.v_mov_b32(V0[i], sONES)
            p.v_mov_b32(V1[i], sONES)
        va = v(8)
        p.v_and_b32(v(7), 15, self.vL)
        p.v_lshrrev_b32(va, 5, self.vL)
        p.v_lshl_add_u32(va, va, 4, v(7))
        p.v_lshlrev_b32(va, 4, va)
        p.s_add_u32(t0, t2, WS_K)
        p.s_add_u32(t1, t2, WS_V)
        p.s_mov_b32(cnt, 64)
        p.s_mov_b32(sV2[0], 0xFFFF)
        p.s_mov_b32(sV2[1], 0xFFFF)
        p.label("L_slow2")
        p.nop(16)
        p.buffer_load_dwordx4(K, self.vL16, rWS, t0, mods="offen sc1")
        p.s_mov_b64("exec", sV2)
        p.buffer_load_dwordx4(V0, va, rWS, t1, mods="offen sc1")
        p.buffer_load_dwordx4(V1, va, rWS, t1, mods="offen offset:512 sc1")
        p.s_mov_b64("exec", -1)
        p.wait_all()
        p.I(MF, S, K, Q, NM)
        for i in range(16):
            p.v_exp_f32(S[i], S[i])
        p.I(SM, O, V0, S[0:8], vIdx)
        p.I(SM, O, V1, S[8:16], vIdx)
        p.s_add_u32(t0, t0, 1024)
        p.s_add_u32(t1, t1, 1024)
        p.s_sub_u32(cnt, cnt, 1)
        p.s_cmp_lg_u32(cnt, 0)
        p.s_cbranch_scc1("L_slow2")
        p.s_mov_b32(sSLOW, 1)
        p.s_branch("L_att_fin")

    def tail(self):
        p = self.p
        L = self.vL
        t0, t1 = sT[0], sT[1]
        H = self.H
        MF, MF16 = "v_mfma_f32_32x32x16_bf16", "v_mfma_f32_16x16x32_bf16"
        p.wait(vm=[f"w2_{i}" for i in range(11)])
        self.barrier()
        self.stamp("t2")
        for st in range(11, 19):
            self.w2_dma(st)
        mh, h, r, c = v(80), v(81), v(82), v(83)
        p.v_bfe_u32(mh, L, 4, 1)
        p.v_lshrrev_b32(h, 5, L)
        p.v_bfe_u32(r, L, 2, 2)
        p.v_and_b32(c, 3, L)
        vA = [[v(84), v(85), v(86)], [v(87), v(88), v(89)]]
        a = v(90)
        p.v_lshl_add_u32(a, h, 2, r)
        p.v_lshlrev_b32(a, 7, a)
        p.v_lshl_add_u32(a, mh, 5, a)
        p.v_lshl_add_u32(a, c, 3, a)
        p.v_lshrrev_b32(v(91), 1, r)
        p.v_lshl_add_u32(a, v(91), 6, a)
        p.s_lshr_b32(t0, sW, 1)
        p.s_lshl_b32(t0, t0, 11)
        p.v_add_u32(vA[0][0], t0, a)
        p.v_xor_b32(vA[1][0], 64, vA[0][0])
        for ct in range(2):
            p.v_add_u32(vA[ct][1], 65536, vA[ct][0])
            p.v_add_u32(vA[ct][2], 131072, vA[ct][0])
        acc = [v(16, 16), v(32, 16)]
        ring = [v(48 + 4 * i, 4) for i in range(8)]
        vWoD = v(92)
        p.v_lshrrev_b32(a, 3, L)
        p.v_bfe_u32(v(91), L, 4, 2)
        p.v_lshlrev_b32(v(91), 1, v(91))
        p.v_and_b32(v(93), 7, L)
        p.v_xor_b32(v(91), v(91), v(93))
        p.v_lshlrev_b32(v(91), 4, v(91))
        p.v_lshl_add_u32(a, a, 10, v(91))
        p.s_lshl_b32(t0, sW, 13)
        p.s_lshl_b32(t1, sC3, 7)
        p.s_add_u32(t0, t0, t1)
        p.v_add_u32(vWoD, t0, a)
        vP = v(94)
        XR = v(96, 4)
        vOut = v(95)

        def rd(i):
            st, ct = i >> 1, i & 1
            for e in range(2):
                ad = W2_SLOT[st] + e * 1024
                p.ds_read_b64_tr_b16(ring[i % 8][2 * e:2 * e + 2], vA[ct][ad >> 16], mods=f"offset:{ad & 0xFFFF}")

        def mm(i):
            st, ct = i >> 1, i & 1
            p.I(MF, acc[ct], ring[i % 8], H[4 * st:4 * st + 4], 0 if st == 0 else acc[ct])

        def post1():
            for st in range(19, 28):
                self.w2_dma(st)
            self.stamp("c1")

        def post2():
            for i in range(8):
                p.s_mov_b32(t0, i * 65536)
                self.dma(vWoD, rWO, t0, L_WO + i * 8192, "wo", m0add=sW1024)
            self.stamp("c2")

        def ex(i):
            if i == self.o.get("oflag_at", 14):
                p.wait(vm="o")
                self.flag_store(v(100), v(101), sT[3])
            if i == 24:
                p.v_and_b32(v(100), 15, L)
                p.v_lshrrev_b32(v(101), 4, L)
                p.v_lshlrev_b32(v(100), 10, v(100))
                p.v_lshl_add_u32(vOut, v(101), 3, v(100))
                p.s_lshl_b32(t0, sR3, 2)
                p.s_and_b32(t1, sW, 3)
                p.s_add_u32(t0, t0, t1)
                p.s_lshl_b32(t0, t0, 14)
                p.s_lshl_b32(t1, sC3, 7)
                p.s_add_u32(t0, t0, t1)
                p.s_lshr_b32(t1, sW, 2)
                p.s_lshl_b32(t1, t1, 6)
                p.s_add_u32(sT[6], t0, t1)
                for b in range(2):
                    p.buffer_load_dwordx2(XR[2 * b:2 * b + 2], vOut, rX, sT[6], mods=f"offen offset:{32 * b}")
            if i == 48:
                p.s_lshl_b32(t0, sR3, 1)
                p.s_bfe_u32(t1, sW, 0x10001)
                p.s_add_u32(t0, t0, t1)
                p.s_lshl_b32(t0, t0, 5)
                p.s_lshr_b32(t1, sW, 2)
                p.s_lshl_b32(t1, t1, 4)
                p.s_add_u32(sT[7], t0, t1)
                p.s_lshl_b32(sT[4], sT[7], 2)
                p.s_add_u32(sT[4], sT[4], WS_FO)
                self.poll_issue(vP, self.vFl, sT[4])

        def w(lo, hi):
            return lambda: p.wait(vm=[f"w2_{i}" for i in range(lo, hi)])

        bars = {22: (2, w(11, 19), post1), 38: (2, w(19, 28), post2)}
        self.gemm_stream(56, rd, mm, 6, bars, ex)
        self.stamp("down_mm")
        self.poll_check(vP, self.vFl, sT[4])
        self.stamp("o_seen")
        OF = v(48, 32)
        vO = v(90)
        g4 = v(91)
        p.v_lshrrev_b32(g4, 4, L)
        p.v_and_b32(v(100), 15, L)
        p.v_and_b32(v(101), 1, g4)
        p.v_lshl_add_u32(v(101), v(101), 5, v(100))
        p.s_and_b32(t0, sW, 1)
        p.s_lshl_b32(t0, t0, 4)
        p.v_add_u32(v(101), t0, v(101))
        p.v_lshlrev_b32(v(101), 4, v(101))
        p.v_lshl_add_u32(vO, h, 10, v(101))
        p.s_lshl_b32(t0, sT[7], 10)
        p.s_add_u32(t0, t0, WS_O)
        for j in range(8):
            if j and j % 2 == 0:
                p.s_add_u32(t0, t0, 4096)
            p.buffer_load_dwordx4(OF[4 * j:4 * j + 4], vO, rWS, t0, mods=f"offen offset:{(j % 2) * 2048} sc1")
        p.wait(vm="wo")
        self.barrier()
        self.stamp("c3")
        tk = v(102)
        p.v_and_b32(tk, 31, L)
        p.s_and_b32(t0, sW, 1)
        p.s_lshl_b32(t0, t0, 5)
        p.v_add_u32(tk, t0, tk)
        p.v_xor_b32(v(103), h, v(100))
        p.v_lshlrev_b32(v(103), 4, v(103))
        p.v_lshl_add_u32(tk, tk, 8, v(103))
        p.s_lshr_b32(t0, sW, 1)
        p.s_lshl_b32(t0, t0, 14)
        p.s_add_u32(t0, t0, L_RED)
        p.v_add_u32(tk, t0, tk)
        for ct in range(2):
            for j in range(4):
                k = (8 * ct + 2 * j) << 4
                ad = v(136 + 4 * ct + j)
                p.v_xor_b32(ad, k, tk)
                p.ds_write_b128(ad, acc[ct][4 * j:4 * j + 4])
        WO = v(128, 128)
        vB = [v(84), v(85), v(86), v(87)]
        hh = v(88)
        p.v_and_b32(hh, 1, g4)
        p.v_lshlrev_b32(a, 4, h)
        p.v_lshl_add_u32(a, hh, 2, a)
        p.v_add_u32(a, a, r)
        p.v_lshlrev_b32(a, 7, a)
        p.v_lshl_add_u32(a, c, 3, a)
        p.v_lshrrev_b32(v(89), 1, r)
        p.v_lshl_add_u32(v(89), hh, 1, v(89))
        p.s_lshr_b32(t0, sW, 2)
        p.s_lshl_b32(t1, t0, 1)
        p.v_xor_b32(v(89), t1, v(89))
        p.v_lshl_add_u32(a, v(89), 5, a)
        p.s_lshl_b32(t1, t0, 15)
        p.v_add_u32(vB[0], t1, a)
        for ct in range(1, 4):
            p.v_xor_b32(vB[ct], 32 * ct, vB[0])
        vR = [v(92), v(93)]
        p.s_lshl_b32(t1, t0, 3)
        p.v_add_u32(v(89), t1, g4)
        p.v_xor_b32(v(89), v(89), v(100))
        p.v_lshlrev_b32(v(89), 4, v(89))
        p.v_lshl_add_u32(v(89), v(100), 8, v(89))
        p.s_and_b32(t1, sW, 3)
        p.s_lshl_b32(t1, t1, 12)
        p.s_add_u32(t1, t1, L_RED)
        p.v_add_u32(vR[0], t1, v(89))
        p.v_xor_b32(vR[1], 64, vR[0])
        self.barrier()
        self.stamp("c4")
        PR = v(16, 32)
        for kq in range(4):
            for b in range(2):
                p.ds_read_b128(PR[8 * kq + 4 * b:8 * kq + 4 * b + 4], vR[b], mods=f"offset:{kq * 16384}")

        def wo_rd(j):
            for ct in range(4):
                for e in range(2):
                    d = WO[16 * j + 4 * ct + 2 * e:16 * j + 4 * ct + 2 * e + 2]
                    p.ds_read_b64_tr_b16(d, vB[ct], mods=f"offset:{L_WO + j * 4096 + e * 1024}")

        wo_rd(0)
        G = PR[0:8]
        tmp = [v(104 + i) for i in range(8)]
        p.s_mov_b32(t0, f32(-LOG2E))
        for i in range(8):
            p.v_add_f32(PR[i], PR[i], PR[8 + i])
            p.v_add_f32(PR[16 + i], PR[16 + i], PR[24 + i])
        wo_rd(1)
        for i in range(8):
            p.v_add_f32(G[i], PR[i], PR[16 + i])
        for i in range(8):
            p.v_mul_f32(tmp[i], t0, G[i])
        wo_rd(2)
        for i in range(8):
            p.v_exp_f32(tmp[i], tmp[i])
        wo_rd(3)
        for i in range(8):
            p.v_add_f32(tmp[i], 1.0, tmp[i])
        wo_rd(4)
        for i in range(8):
            p.v_rcp_f32(tmp[i], tmp[i])
        wo_rd(5)
        for i in range(8):
            p.v_mul_f32(G[i], G[i], tmp[i])
        wo_rd(6)
        XU = [v(112 + i) for i in range(8)]
        for i in range(4):
            p.v_lshlrev_b32(XU[2 * i], 16, XR[i])
            p.v_and_b32(XU[2 * i + 1], sMASK, XR[i])
        wo_rd(7)
        vEw, vEr = v(92), v(93)
        p.s_lshl_b32(t0, sW, 11)
        p.s_add_u32(t0, t0, L_EX)
        p.v_add_u32(vEw, t0, self.vL16)
        p.s_xor_b32(t1, sW, 4)
        p.s_lshl_b32(t1, t1, 11)
        p.s_add_u32(t1, t1, L_EX)
        p.v_add_u32(vEr, t1, self.vL16)
        self.stamp("g_done")
        SA = v(24, 16)
        for j in range(8):
            for ct in (2, 3, 0, 1):
                d = SA[4 * ct:4 * ct + 4]
                p.I(MF16, d, WO[16 * j + 4 * ct:16 * j + 4 * ct + 4], OF[4 * j:4 * j + 4], 0 if j == 0 else d)
        self.stamp("wo_mm")
        for b in range(2):
            p.ds_write_b128(vEw, SA[8 + 4 * b:12 + 4 * b], mods=f"offset:{b * 1024}")
        self.barrier()
        for b in range(2):
            p.ds_read_b128(SA[8 + 4 * b:12 + 4 * b], vEr, mods=f"offset:{b * 1024}")
        for i in range(8):
            p.v_add_f32(SA[i], SA[i], SA[8 + i])
        for i in range(8):
            p.v_fma_f32(SA[i], SA[i], G[i], XU[i])
        for i in range(4):
            p.v_cvt_pk_bf16_f32(SA[i], SA[2 * i], SA[2 * i + 1])
        for b in range(2):
            p.buffer_store_dwordx2(SA[2 * b:2 * b + 2], vOut, rOUT, sT[6], mods=f"offen offset:{32 * b}")
        p.s_or_b32(t0, sG, sW)
        p.s_cmp_lg_u32(t0, 0)
        p.s_cbranch_scc1("L_noep")
        p.s_mov_b32(t0, WS_E)
        self.flag_store(v(100), v(101), t0)
        p.label("L_noep")
        self.stamp("end")
        if self.o.get("stamp"):
            p.wait_all()
            p.raw("    s_memrealtime s[100:101]")
            p.wait_smem()
            p.s_lshl_b32(t0, sG, 3)
            p.s_add_u32(t0, t0, sW)
            p.s_lshl_b32(t0, t0, 7)
            p.s_add_u32(t0, t0, WS_STAMP)
            p.v_mov_b32(v(1), 0)
            n = len(self.o["stamp_names"])
            vals = STAMP_REGS[:n] + [s(98), s(100)]
            for i, x in enumerate(vals):
                p.v_mov_b32(v(2), x)
                p.buffer_store_dword(v(2), v(1), rWS, t0, mods=f"offen offset:{4 * i}")
                p.wait_all()
        p.label("L_exit")
        p.s_endpgm()

    def build(self):
        p = self.p
        self.setup()
        self.layernorm()
        self.gemm1_setup()
        p.s_cmp_ge_u32(sW, 4)
        p.s_cbranch_scc1("L_hf1")
        st = p.fork()
        self.gemm1(0)
        p.s_branch("L_att")
        end0 = p.fork()
        p.restore(st)
        p.label("L_hf1")
        self.gemm1(1)
        p.label("L_att")
        p.join(end0)
        self.attention()
        self.tail()
        self.slow_path()
        head = open("cdna_kernels/" + NAME[:-7] + ".s.ref").read().split("; Override launch")[0]
        return (head
                + f"; @launch grid=(256,1,1) block=(512,1,1) lds={LDS_BYTES}\n"
                + "; generated by gen/gen.py: one persistent launch, phases LN+QKV | FFN up | attention | FFN down + out projection\n"
                + '.amdgcn_target "amdgcn-amd-amdhsa--gfx950"\n.text\n'
                + f".globl {NAME}\n.p2align 8\n.type {NAME},@function\n{NAME}:\n"
                + p.text()
                + '.section .rodata,"a"\n.p2align 6\n'
                + f".amdhsa_kernel {NAME}\n"
                + "  .amdhsa_next_free_vgpr 256\n  .amdhsa_next_free_sgpr 102\n  .amdhsa_accum_offset 256\n"
                + "  .amdhsa_group_segment_fixed_size 0\n  .amdhsa_kernarg_size 80\n"
                + "  .amdhsa_user_sgpr_count 2\n  .amdhsa_user_sgpr_kernarg_segment_ptr 1\n"
                + "  .amdhsa_system_sgpr_workgroup_id_x 1\n.end_amdhsa_kernel\n")


def generate(**opt):
    if opt.get("stamp"):
        opt["stamp_names"] = {}
    g = Gen(opt)
    text = g.build()
    return text, g


if __name__ == "__main__":
    out = sys.argv[1] if len(sys.argv) > 1 else "cdna_kernels/" + NAME[:-7] + ".s"
    opt = eval(sys.argv[2]) if len(sys.argv) > 2 else {}
    text, g = generate(**opt)
    open(out, "w").write(text)
    print("written", out, "instr counts", g.p.count, "nop states", g.p.nops, file=sys.stderr)
    if opt.get("stamp"):
        print(g.o["stamp_names"], file=sys.stderr)
```

```python
import struct
import sys

from asmdsl import Abs, Neg, Prog, s, v

NAME = "recurrent_scan__softmax_full_mha__glu_gated_swiglu__prompt_kernel"


def f32(x):
    return struct.unpack("<I", struct.pack("<f", x))[0]


WS_E = 0
WS_FQ = 0x1000
WS_FH = 0x2000
WS_FO = 0x4000
WS_Q = 0x10000
WS_K = WS_Q + 0x200000
WS_V = WS_K + 0x200000
WS_O = WS_V + 0x200000
WS_H = WS_O + 0x200000
WS_STAMP = WS_H + 64 * 112 * 1024
WS_END = WS_STAMP + 256 * 8 * 128

LDS_BYTES = 163840
L_XST = 0
L_WQ = 65536
UPST = 14464
UP_U = 7296
L_DUMMY = 57856
UP_BASE = ([0 + UPST * i for i in range(4)] + [65536 + UPST * i for i in range(6)]
           + [0 + UPST * i for i in range(4)] + [65536 + UPST * i for i in range(2)])
CH = 16512
CH_BASE = [94464 + CH * i for i in range(4)] + [CH * i for i in range(4)]
SL_F = [66048 + 8192 * i for i in range(3)]
SL_P = [94464 + 8192 * i for i in range(8)]
SL_R = [8192 * i for i in range(8)]
W2_SLOT = SL_F + SL_P + SL_R + SL_F + SL_P[:6]
L_WO = 0
L_RED = 66048
L_EX = L_RED + 65536

LOG2E = 1.4426950408889634
QSCALE = 0.25 * LOG2E
M_OFF = 100.0
SPIN_MAX = 1 << 18

sKARG = s(0, 2)
sG = s(2)
pX, pWQ, pWO, pW1, pW3, pW2, pOUT, pWS = s(4, 2), s(6, 2), s(8, 2), s(12, 2), s(14, 2), s(16, 2), s(18, 2), s(22, 2)
rX, rWQ, rWO, rW1, rW3, rW2, rOUT, rWS = (s(24 + 4 * i, 4) for i in range(8))
sW, sRB, sCB, sHEAD, sQB, sEP = s(56), s(57), s(58), s(59), s(60), s(63)
sR3, sC3 = sHEAD, sQB
sT = [s(64 + i) for i in range(8)]
sUPm0, sUPmask, sUPoff = s(72), s(73), s(74)
sW1024, sW1040, sKV = s(75), s(76), s(77)
sSLOW, sSPIN = s(78), s(79)
sMASK, sONES = s(61), s(62)
sV2 = s(80, 2)
STAMP_REGS = [s(84 + i) for i in range(14)] + [s(4 + i) for i in range(16)]


class Gen:
    def __init__(self, opt):
        self.o = opt
        self.p = Prog()
        self.nstamp = 0
        self.nlab = 0

    def stamp(self, name):
        if not self.o.get("stamp"):
            return
        p = self.p
        i = self.o["stamp_names"].setdefault(name, len(self.o["stamp_names"]))
        p.raw("    s_memtime s[100:101]")
        p.wait_smem()
        p.s_mov_b32(STAMP_REGS[i], s(100))

    def srd(self, r, ptr, nbytes):
        p = self.p
        p.s_mov_b32(r[0], ptr[0])
        p.s_mov_b32(r[1], ptr[1])
        p.s_mov_b32(r[2], nbytes)
        p.s_mov_b32(r[3], 0x00020000)

    def lab(self, base):
        self.nlab += 1
        return f"L_{base}_{self.nlab}"

    def barrier(self):
        self.p.wait(lg="*")
        self.p.s_barrier()

    def dma(self, voff, srd, soff, m0val, tag, m0add=None, sc1=False):
        p = self.p
        if m0add is None:
            p.s_mov_b32("m0", m0val)
        else:
            p.s_add_u32("m0", m0add, m0val)
        p.buffer_load_dwordx4(voff, srd, soff, mods="offen sc1 lds" if sc1 else "offen lds", tag=tag)

    def poll_issue(self, dst, vaddr, soff):
        self.p.buffer_load_dword(dst, vaddr, rWS, soff, mods="offen sc1")

    def poll_check(self, dst, vaddr, soff):
        p = self.p
        ok, again = self.lab("ok"), self.lab("poll")
        p.v_cmp_ne_u32("vcc", sEP, dst)
        p.s_cbranch_vccz(ok)
        p.s_mov_b32(sSPIN, SPIN_MAX)
        p.label(again)
        p.raw(f"    buffer_load_dword {dst}, {vaddr}, {rWS}, {soff} offen sc1")
        p.raw("    s_waitcnt vmcnt(0)")
        p.raw(f"    v_cmp_ne_u32 vcc, {sEP}, {dst}")
        p.raw(f"    s_cbranch_vccz {ok}")
        p.raw(f"    s_sub_u32 {sSPIN}, {sSPIN}, 1")
        p.raw(f"    s_cmp_lg_u32 {sSPIN}, 0")
        p.raw(f"    s_cbranch_scc1 {again}")
        p.label(ok)

    def flag_store(self, vtmp, vtmp2, soff):
        p = self.p
        p.v_mov_b32(vtmp, sEP)
        p.v_mov_b32(vtmp2, 0)
        p.s_mov_b64("exec", 1)
        p.buffer_store_dword(vtmp, vtmp2, rWS, soff, mods="offen sc1", tag="flag")
        p.s_mov_b64("exec", -1)

    def gemm_stream(self, n, read, mfma, depth, bars=None, extra=None):
        p = self.p
        bars = bars or {}
        passed = set()
        st = {"nxt": 0}

        def issue(i):
            while st["nxt"] < n and st["nxt"] <= i + depth and not any(
                    f <= st["nxt"] and f not in passed for f in bars):
                read(st["nxt"])
                st["nxt"] += 1

        for i in range(-depth, n):
            for f, (lead, pre, post) in sorted(bars.items()):
                if f not in passed and i == f - lead:
                    assert st["nxt"] == min(f, n), (st["nxt"], f)
                    if pre:
                        pre()
                    self.barrier()
                    passed.add(f)
                    issue(i)
                    if post:
                        post()
            if i >= 0:
                mfma(i)
            issue(i)
            if extra and i >= 0:
                extra(i)

    def setup(self):
        p = self.p
        p.s_cmp_ge_u32(sG, 256)
        p.s_cbranch_scc1("L_exit")
        if self.o.get("stamp") or self.o.get("padto"):
            p.raw("    s_memrealtime s[98:99]")
        p.raw("    s_load_dwordx16 s[4:19], s[0:1], 0")
        p.raw("    s_load_dwordx4 s[20:23], s[0:1], 64")
        self.vL = v(0)
        p.v_lshrrev_b32(v(1), 6, v(0))
        p.v_and_b32(v(0), 63, v(0))
        p.v_readfirstlane_b32(sW, v(1))
        t0, t1, t2 = sT[0], sT[1], sT[2]
        p.s_and_b32(t0, sG, 7)
        p.s_lshr_b32(t1, sG, 3)
        p.s_and_b32(sQB, t1, 7)
        p.s_lshr_b32(t1, t1, 3)
        p.s_lshl_b32(t2, t0, 2)
        p.s_add_u32(sHEAD, t2, t1)
        p.s_and_b32(t2, t0, 1)
        p.s_lshl_b32(t2, t2, 3)
        p.s_add_u32(sRB, t2, sQB)
        p.s_lshr_b32(t2, t0, 1)
        p.s_lshl_b32(t2, t2, 2)
        p.s_add_u32(sCB, t2, t1)
        vXa = v(1)
        p.v_lshrrev_b32(v(2), 2, self.vL)
        p.v_and_b32(v(3), 3, self.vL)
        p.v_lshlrev_b32(v(2), 10, v(2))
        p.v_lshl_add_u32(vXa, v(3), 4, v(2))
        p.s_lshl_b32(t0, sRB, 17)
        p.s_lshl_b32(t1, sW, 14)
        p.s_add_u32(t0, t0, t1)
        p.s_mov_b32(sMASK, 0xFFFF0000)
        p.s_mov_b32(sONES, 0x3F803F80)
        p.s_lshl_b32(sW1024, sW, 10)
        p.s_mul_i32(sW1040, sW, 1040)
        p.wait_smem()
        self.stamp("start")
        self.srd(rX, pX, 2048 * 1024)
        self.X = v(64, 64)
        for i in range(16):
            p.buffer_load_dwordx4(self.X[4 * i:4 * i + 4], vXa, rX, t0, mods=f"offen offset:{64 * i}")
        p.raw(f"    s_load_dword {sEP}, {pWS}, {WS_E}")
        self.srd(rWQ, pWQ, 512 * 3072)
        p.s_mov_b32(t2, 43691)
        pat = [v(4), v(5), v(6)]
        for q in range(3):
            p.v_add_u32(v(2), 64 * q, self.vL)
            p.v_mul_u32_u24(v(3), t2, v(2))
            p.v_lshrrev_b32(v(3), 19, v(3))
            p.v_mul_u32_u24(v(7), 12, v(3))
            p.v_sub_u32(v(2), v(2), v(7))
            p.v_mul_u32_u24(v(3), 3072, v(3))
            p.v_lshrrev_b32(v(7), 2, v(2))
            p.v_lshl_add_u32(v(3), v(7), 10, v(3))
            p.v_and_b32(v(2), 3, v(2))
            p.v_lshl_add_u32(pat[q], v(2), 4, v(3))
        p.s_mul_i32(t0, sW, 49152)
        p.s_lshl_b32(t1, sCB, 6)
        p.s_add_u32(t0, t0, t1)
        p.s_mul_i32(t1, sW, 3072)
        for kk in range(4):
            for q in range(3):
                self.dma(pat[q], rWQ, t0, L_WQ + kk * 8 * 3072 + q * 1024, "wq", m0add=t1)
            if kk < 3:
                p.s_add_u32(t0, t0, 8 * 49152)
        self.srd(rW1, pW1, 512 * 3584)
        self.srd(rW3, pW3, 512 * 3584)
        self.srd(rWS, pWS, WS_END)
        self.srd(rW2, pW2, 1792 * 1024)
        self.srd(rWO, pWO, 512 * 1024)
        self.srd(rOUT, pOUT, 2048 * 1024)
        p.wait_smem()
        p.s_mul_i32(sEP, sEP, 0x9E3779B1)
        p.s_add_u32(sEP, sEP, 0x7F4A7C15)

    def layernorm(self):
        p = self.p
        X, L = self.X, self.vL
        sa, sb, qa, qb = v(8), v(9), v(10), v(11)
        vOne = v(12)
        vWr = v(13)
        self.vXe, self.vXo = v(14), v(15)
        t0 = sT[0]
        p.v_and_b32(v(2), 3, L)
        p.v_lshrrev_b32(v(3), 2, L)
        p.s_and_b32(t0, sW, 1)
        p.s_lshl_b32(t0, t0, 4)
        p.v_add_u32(v(3), t0, v(3))
        p.v_lshlrev_b32(v(7), 1, v(2))
        p.v_xor_b32(v(3), v(3), v(7))
        p.v_lshlrev_b32(v(3), 4, v(3))
        p.v_lshrrev_b32(v(7), 1, v(2))
        p.v_lshl_add_u32(v(3), v(7), 12, v(3))
        p.v_and_b32(v(7), 1, v(2))
        p.v_lshl_add_u32(v(3), v(7), 9, v(3))
        p.s_lshr_b32(t0, sW, 1)
        p.s_lshl_b32(t0, t0, 10)
        p.v_add_u32(vWr, t0, v(3))
        p.v_and_b32(v(2), 31, L)
        p.v_lshrrev_b32(v(3), 5, L)
        p.v_lshlrev_b32(v(7), 1, v(3))
        p.v_xor_b32(v(2), v(2), v(7))
        p.v_lshlrev_b32(v(2), 4, v(2))
        p.v_lshl_add_u32(v(2), v(3), 9, v(2))
        p.s_and_b32(t0, sW, 3)
        p.s_lshl_b32(t0, t0, 10)
        p.v_add_u32(self.vXe, t0, v(2))
        p.v_xor_b32(self.vXo, 64, self.vXe)
        p.v_mov_b32(vOne, sONES)
        for r in (sa, sb, qa, qb):
            p.v_mov_b32(r, 0)
        for i in range(32):
            a, b = X[2 * i], X[2 * i + 1]
            p.v_dot2_f32_bf16(sa, a, vOne, sa)
            p.v_dot2_f32_bf16(qa, a, a, qa)
            p.v_dot2_f32_bf16(sb, b, vOne, sb)
            p.v_dot2_f32_bf16(qb, b, b, qb)
        self.stamp("x_in")
        p.v_add_f32(sa, sa, sb)
        p.v_add_f32(qa, qa, qb)
        dp = "row_mask:0xf bank_mask:0xf"
        p.v_add_f32_dpp(sb, sa, sa, mods="quad_perm:[1,0,3,2] " + dp)
        p.v_add_f32_dpp(qb, qa, qa, mods="quad_perm:[1,0,3,2] " + dp)
        p.v_add_f32_dpp(sa, sb, sb, mods="quad_perm:[2,3,0,1] " + dp)
        p.v_add_f32_dpp(qa, qb, qb, mods="quad_perm:[2,3,0,1] " + dp)
        p.v_mul_f32(sa, f32(1.0 / 512), sa)
        p.v_mul_f32(qa, f32(1.0 / 512), qa)
        p.v_fma_f32(qa, Neg(sa), sa, qa)
        p.v_max_f32(qa, 0, qa)
        p.v_add_f32(qa, f32(1e-5), qa)
        rstd, nm = qb, sb
        p.v_rsq_f32(rstd, qa)
        p.v_mul_f32(nm, sa, rstd)
        tmp = [v(16 + i) for i in range(8)]

        def norm(i):
            g = X[4 * i:4 * i + 4]
            for j in range(4):
                p.v_lshlrev_b32(tmp[2 * j], 16, g[j])
                p.v_and_b32(tmp[2 * j + 1], sMASK, g[j])
            for j in range(8):
                p.v_fma_f32(tmp[j], tmp[j], rstd, Neg(nm))
            for j in range(4):
                p.v_cvt_pk_bf16_f32(g[j], tmp[2 * j], tmp[2 * j + 1])

        def wr(i):
            p.ds_write_b128(vWr, X[4 * i:4 * i + 4], mods=f"offset:{L_XST + (i % 8) * 8192}")

        self.XF = v(128, 128)
        for i in range(8):
            norm(i)
            wr(i)
        self.barrier()
        for i in range(8, 16):
            self.xread(2 * (i - 8))
            self.xread(2 * (i - 8) + 1)
            norm(i)
        self.barrier()
        for i in range(8, 16):
            wr(i)
        p.wait(vm="wq")
        self.barrier()
        self.stamp("ln_done")

    def xread(self, ks):
        a = self.vXo if ks & 1 else self.vXe
        self.p.ds_read_b128(self.XF[4 * ks:4 * ks + 4], a, mods=f"offset:{L_XST + (ks % 16) * 4096}")

    def gemm1_setup(self):
        p = self.p
        L = self.vL
        t0, t1 = sT[0], sT[1]
        mh, h, r, c = v(16), v(17), v(18), v(19)
        p.v_bfe_u32(mh, L, 4, 1)
        p.v_lshrrev_b32(h, 5, L)
        p.v_bfe_u32(r, L, 2, 2)
        p.v_and_b32(c, 3, L)
        p.v_lshl_add_u32(v(20), h, 3, r)
        self.vWQ = [v(4), v(5)]
        p.v_mul_u32_u24(v(21), 192, v(20))
        p.v_lshl_add_u32(v(21), mh, 5, v(21))
        p.v_lshl_add_u32(v(21), c, 3, v(21))
        p.v_add_u32(self.vWQ[0], L_WQ, v(21))
        p.v_add_u32(self.vWQ[1], L_WQ + 49152, v(21))
        self.vUP = [v(6), v(7), v(8)]
        p.v_mul_u32_u24(v(21), 224, v(20))
        p.v_mul_u32_u24(v(22), UP_U, mh)
        p.v_add_u32(v(21), v(21), v(22))
        p.v_lshl_add_u32(self.vUP[0], c, 3, v(21))
        p.v_add_u32(self.vUP[1], 65536, self.vUP[0])
        p.v_add_u32(self.vUP[2], 131072, self.vUP[0])
        self.vUD = v(9)
        p.s_lshl_b32(t0, sW, 6)
        p.v_add_u32(v(20), t0, L)
        p.v_mul_u32_u24(v(21), 4682, v(20))
        p.v_lshrrev_b32(v(21), 16, v(21))
        p.v_mul_u32_u24(v(22), 14, v(21))
        p.v_sub_u32(v(20), v(20), v(22))
        p.v_mul_u32_u24(v(21), 3584, v(21))
        p.v_lshl_add_u32(v(20), v(20), 4, v(21))
        p.s_cmp_eq_u32(sW, 7)
        p.s_cselect_b32(t0, 0x40000000, 0)
        p.s_cselect_b32(sUPm0, L_DUMMY, sW1024)
        p.s_cselect_b32(sUPmask, 0, -1)
        p.v_add_u32(self.vUD, t0, v(20))
        p.s_mul_i32(sUPoff, sCB, 224)
        self.vL16, self.vKst, self.vVst, self.vFl = v(10), v(11), v(12), v(13)
        p.v_lshlrev_b32(self.vL16, 4, L)
        p.v_and_b32(v(20), 0x33, L)
        p.v_bfe_u32(v(21), L, 2, 1)
        p.v_lshl_add_u32(v(20), v(21), 3, v(20))
        p.v_bfe_u32(v(21), L, 3, 1)
        p.v_lshl_add_u32(v(20), v(21), 2, v(20))
        p.v_lshlrev_b32(self.vKst, 4, v(20))
        p.v_and_b32(v(20), 15, L)
        p.v_lshlrev_b32(self.vFl, 2, v(20))
        p.v_lshl_add_u32(v(20), h, 4, v(20))
        p.v_lshlrev_b32(v(20), 4, v(20))
        p.v_lshl_add_u32(self.vVst, mh, 16, v(20))
        p.s_lshl_b32(t0, sHEAD, 16)
        p.s_add_u32(sKV, t0, sW1024)

    def up_dma(self, stage):
        p = self.p
        t0, t1 = sT[0], sT[1]
        p.s_add_u32(t0, sUPoff, stage * 32 * 3584)
        for srd, off in ((rW1, 0), (rW3, UP_U)):
            p.s_and_b32(t1, sUPmask, UP_BASE[stage] + off)
            self.dma(self.vUD, srd, t0, t1, f"up{stage}", m0add=sUPm0)

    def kv_dma(self, c):
        p = self.p
        t0 = sT[0]
        p.s_add_u32(t0, sKV, WS_K + c * 8192)
        self.dma(self.vL16, rWS, t0, CH_BASE[c], f"kv{c}", m0add=sW1024, sc1=True)
        p.s_add_u32(t0, sKV, WS_V + c * 8192)
        self.dma(self.vL16, rWS, t0, CH_BASE[c] + 8192, f"kv{c}", m0add=sW1040, sc1=True)
        p.s_add_u32(t0, sW1040, CH_BASE[c] + 8192 + 1024)
        p.v_mov_b32(v(31), t0)
        p.s_mov_b64("exec", 1)
        p.ds_write_b128(v(31), self.vOnes4)
        p.s_mov_b64("exec", -1)

    def gemm1(self, hf):
        p = self.p
        XF = self.XF
        ring = [v(32 + 4 * i, 4) for i in range(8)]
        acc = [v(64 + 16 * i, 16) for i in range(4)]
        t0, t1 = sT[0], sT[1]
        MF = "v_mfma_f32_32x32x16_bf16"

        tiles = [0, 1] if hf == 0 else [2]
        nt = len(tiles)
        depth = 5 if hf == 0 else 4

        def rd(i):
            ks, T = i // nt, tiles[i % nt]
            for e in range(2):
                off = (ks % 16) * 3072 + e * 768 + T * 64
                p.ds_read_b64_tr_b16(ring[i % 8][2 * e:2 * e + 2], self.vWQ[ks // 16], mods=f"offset:{off}")

        def mm(i):
            ks, k = i // nt, i % nt
            x, w = XF[4 * ks:4 * ks + 4], ring[i % 8]
            a, b = (w, x) if hf == 0 else (x, w)
            p.I(MF, acc[k], a, b, 0 if ks == 0 else acc[k])

        def ex(i):
            ks, k = i // nt, i % nt
            if k == 0 and ks < 8:
                self.xread(16 + 2 * ks)
                self.xread(17 + 2 * ks)

        def post_mid():
            for st in range(4):
                self.up_dma(st)

        self.gemm_stream(32 * nt, rd, mm, depth, {12 * nt: (2, None, post_mid)}, ex)
        p.wait(vm=["up0", "up1", "up2", "up3"])
        self.barrier()
        self.stamp("qkv_mm")
        p.s_lshl_b32(t0, sRB, 2)
        p.s_and_b32(t1, sW, 3)
        p.s_add_u32(sT[3], t0, t1)
        p.s_lshl_b32(t0, sT[3], 10)
        p.s_lshl_b32(t1, sCB, 17)
        p.s_add_u32(sT[2], t0, t1)
        pk = v(16, 8)
        if hf == 0:
            p.s_mov_b32(t1, f32(QSCALE))
            for i in range(8):
                p.v_cvt_pk_bf16_f32(pk[i], acc[1][2 * i], acc[1][2 * i + 1])
            for hd in range(2):
                p.s_add_u32(t0, sT[2], WS_K + hd * 65536)
                p.buffer_store_dwordx4(pk[4 * hd:4 * hd + 4], self.vKst, rWS, t0, mods="offen sc1", tag="qkv")
            for i in range(16):
                p.v_mul_f32(acc[0][i], t1, acc[0][i])
            pq = v(24, 8)
            for i in range(8):
                p.v_cvt_pk_bf16_f32(pq[i], acc[0][2 * i], acc[0][2 * i + 1])
            for hd in range(2):
                p.s_add_u32(t0, sT[2], WS_Q + hd * 65536)
                p.buffer_store_dwordx4(pq[4 * hd:4 * hd + 4], self.vL16, rWS, t0, mods="offen sc1", tag="qkv")
        else:
            for i in range(8):
                p.v_cvt_pk_bf16_f32(pk[i], acc[0][2 * i], acc[0][2 * i + 1])
            p.s_add_u32(t0, sT[2], WS_V)
            for sx in range(2):
                p.buffer_store_dwordx4(pk[4 * sx:4 * sx + 4], self.vVst, rWS, t0,
                                       mods=f"offen offset:{512 * sx} sc1", tag="qkv")
        for st in range(4, 10):
            self.up_dma(st)
        self.vOnes4 = v(24, 4)
        for i in range(4):
            p.v_mov_b32(self.vOnes4[i], sONES)
        self.stamp("qkv_st")

        tiles = [0, 1, 2] if hf == 0 else [3, 4, 5, 6]
        nt = len(tiles)
        vP = v(28)

        def rd(i):
            ks, T = i // nt, tiles[i % nt]
            for e in range(2):
                a = UP_BASE[ks >> 1] + (ks & 1) * 3584 + e * 896 + T * 32
                p.ds_read_b64_tr_b16(ring[i % 8][2 * e:2 * e + 2], self.vUP[a >> 16], mods=f"offset:{a & 0xFFFF}")

        def mm(i):
            ks, k = i // nt, i % nt
            p.I(MF, acc[k], ring[i % 8], XF[4 * ks:4 * ks + 4], 0 if ks == 0 else acc[k])

        def w(*tags):
            return lambda: p.wait(vm=list(tags))

        def post1():
            for st in range(10, 14):
                self.up_dma(st)

        def post2():
            for st in range(14, 16):
                self.up_dma(st)
            if hf == 0:
                skip = self.lab("nf")
                p.s_cmp_lg_u32(sW, 0)
                p.s_cbranch_scc1(skip)
                st0 = p.fork()
                p.s_lshl_b32(t0, sCB, 8)
                p.s_lshl_b32(t1, sRB, 2)
                p.s_add_u32(t0, t0, t1)
                p.s_add_u32(t0, t0, WS_FQ)
                self.flag_store(v(29), v(30), t0)
                p.label(skip)
                p.join(st0)
            self.stamp("q_flag")

        def fq_off():
            p.s_lshr_b32(sT[4], sHEAD, 1)
            p.s_lshl_b32(sT[4], sT[4], 8)
            p.s_add_u32(sT[4], sT[4], WS_FQ)

        def post3():
            self.stamp("b3")
            self.poll_check(vP, self.vFl, sT[4])
            self.stamp("q_seen")
            for c in range(4):
                self.kv_dma(c)

        def post4():
            for c in range(4, 7):
                self.kv_dma(c)
            p.s_lshl_b32(t0, sQB, 13)
            p.s_add_u32(t0, t0, sKV)
            p.s_add_u32(t0, t0, WS_Q)
            p.buffer_load_dwordx4(self.vQ, self.vL16, rWS, t0, mods="offen sc1")

        def ex(i):
            if i == 18 * nt:
                fq_off()
                self.poll_issue(vP, self.vFl, sT[4])

        self.vQ = v(128, 4)
        lead = 2
        bars = {8 * nt: (lead, w("up4", "up5"), post1),
                12 * nt: (lead, w("up6", "up7", "up8", "up9", "qkv"), post2),
                20 * nt: (lead, w("up10", "up11", "up12", "up13"), post3),
                28 * nt: (lead, w("up14", "up15"), post4)}
        self.gemm_stream(32 * nt, rd, mm, 6, bars, ex)
        self.stamp("up_mm")

        def last_barrier():
            p.wait(vm=["kv0", "kv1", "kv2", "kv3"])
            self.barrier()
            self.kv_dma(7)
            for st in range(3):
                self.w2_dma(st)

        self.w2_setup()
        if hf == 1:
            last_barrier()
        p.s_mul_i32(t0, sT[3], 112)
        p.s_mul_i32(t1, sCB, 7)
        p.s_add_u32(t0, t0, t1)
        p.s_lshl_b32(sT[2], t0, 10)
        p.s_mov_b32(sT[5], f32(-LOG2E))
        tmp = [v(32 + i) for i in range(8)]
        for k, T in enumerate(tiles):
            g, u = acc[k][0:8], acc[k][8:16]
            for i in range(8):
                p.v_mul_f32(tmp[i], sT[5], g[i])
            for i in range(8):
                p.v_exp_f32(tmp[i], tmp[i])
            for i in range(8):
                p.v_mul_f32(u[i], g[i], u[i])
            for i in range(8):
                p.v_add_f32(tmp[i], 1.0, tmp[i])
            for i in range(8):
                p.v_rcp_f32(tmp[i], tmp[i])
            for i in range(8):
                p.v_mul_f32(u[i], u[i], tmp[i])
            for i in range(4):
                p.v_cvt_pk_bf16_f32(g[i], u[2 * i], u[2 * i + 1])
            p.s_add_u32(t0, sT[2], WS_H + T * 1024)
            p.buffer_store_dwordx4(g[0:4], self.vL16, rWS, t0, mods="offen sc1", tag="h")
        if hf == 0:
            last_barrier()
        self.stamp("up_done")

    def w2_setup(self):
        p = self.p
        L = self.vL
        t0, t1 = sT[0], sT[1]
        self.vW2D = v(9)
        a, b = v(20), v(21)
        p.v_lshrrev_b32(a, 3, L)
        p.v_bfe_u32(b, L, 4, 1)
        p.v_lshlrev_b32(b, 2, b)
        p.v_and_b32(v(22), 7, L)
        p.v_xor_b32(b, b, v(22))
        p.v_lshlrev_b32(b, 4, b)
        p.v_lshl_add_u32(a, a, 10, b)
        p.s_lshr_b32(t0, sW, 1)
        p.s_mul_i32(t0, t0, 28 * 16 * 1024)
        p.s_and_b32(t1, sW, 1)
        p.s_lshl_b32(t1, t1, 13)
        p.s_add_u32(t0, t0, t1)
        p.s_lshl_b32(t1, sC3, 7)
        p.s_add_u32(t0, t0, t1)
        p.v_add_u32(self.vW2D, t0, a)

    def w2_dma(self, st):
        p = self.p
        p.s_mov_b32(sT[0], st * 16384)
        self.dma(self.vW2D, rW2, sT[0], W2_SLOT[st], f"w2_{st}", m0add=sW1024)

    def attention(self):
        p = self.p
        L = self.vL
        t0, t1 = sT[0], sT[1]
        S = [v(16, 16), v(32, 16)]
        O, NM = v(48, 16), v(64, 16)
        Q = self.vQ
        K, V0, V1, XA, XB = v(80, 4), v(84, 4), v(88, 4), v(92, 4), v(96, 4)
        vIdx = v(14)
        vK, vV0, vV1 = v(4), v(5), v(6)
        self.H = v(144, 112)
        self.att = dict(S=S, O=O, NM=NM, Q=Q, K=K, V0=V0, V1=V1, vIdx=vIdx)
        MF, SM = "v_mfma_f32_32x32x16_bf16", "v_smfmac_f32_32x32x32_bf16"
        base = {"cur": None}

        p.v_and_b32(v(7), 15, L)
        p.v_lshrrev_b32(v(8), 5, L)
        p.v_lshl_add_u32(v(7), v(8), 4, v(7))
        p.v_lshlrev_b32(v(7), 4, v(7))
        p.v_add_u32(v(8), 512, v(7))
        p.v_and_b32(v(15), 31, L)
        p.v_cmp_eq_u32("vcc", 16, v(15))
        p.v_mov_b32(v(15), 1024)
        p.v_cndmask_b32(vV0, v(7), v(15), "vcc")
        p.v_cndmask_b32(vV1, v(8), v(15), "vcc")
        p.v_mov_b32(vK, self.vL16)
        p.v_mov_b32(vIdx, 0xDDDD)
        win = {id(vK): 0, id(vV0): 0, id(vV1): 0}

        def rd(dst, areg, addr):
            w = win[id(areg)]
            if not (w <= addr < w + 65536):
                nw = addr & ~0xFF
                p.v_add_u32(areg, (nw - w) & 0xFFFFFFFF, areg)
                win[id(areg)] = w = nw
            p.ds_read_b128(dst, areg, mods=f"offset:{addr - w}")

        def rdK(dst, b):
            rd(dst, vK, CH_BASE[b >> 3] + (b & 7) * 1024)

        def rdV(dst, b, sx):
            rd(dst, vV1 if sx else vV0, CH_BASE[b >> 3] + 8192 + (b & 7) * 1040)

        rdK(XA, 0)
        rdK(K, 1)
        rdV(V0, 0, 0)
        p.I(MF, S[0], XA, Q, 0)
        p.I(MF, S[1], K, Q, 0)
        for i in range(16):
            p.v_mov_b32(O[i], 0)
        m = v(7)
        p.v_max3_f32(m, S[0][0], S[0][1], S[0][2])
        for i in range(3, 15, 2):
            p.v_max3_f32(m, S[0][i], S[0][i + 1], m)
        p.v_max3_f32(m, S[0][15], S[1][0], m)
        for i in range(1, 15, 2):
            p.v_max3_f32(m, S[1][i], S[1][i + 1], m)
        p.v_max_f32(m, S[1][15], m)
        p.v_mov_b32(v(8), m)
        p.v_permlane32_swap_b32(m, v(8))
        p.v_max_f32(m, m, v(8))
        p.v_sub_f32(NM[0], f32(-M_OFF), m)
        for i in range(1, 16):
            p.v_mov_b32(NM[i], NM[0])
        p.I(MF, S[0], XA, Q, NM)
        p.s_mov_b32(sSLOW, 0)
        self.stamp("att_start")

        vP = v(15)
        hq = []

        def h_loads():
            def first():
                p.s_lshl_b32(t0, sR3, 1)
                p.s_and_b32(t1, sW, 1)
                p.s_add_u32(t0, t0, t1)
                p.s_mul_i32(t0, t0, 112)
                p.s_lshr_b32(t1, sW, 1)
                p.s_mul_i32(t1, t1, 28)
                p.s_add_u32(t0, t0, t1)
                p.s_lshl_b32(t0, t0, 10)
                p.s_add_u32(sT[5], t0, WS_H)
            for st in range(28):
                def one(st=st):
                    if st == 0:
                        first()
                    elif st % 4 == 0:
                        p.s_add_u32(sT[5], sT[5], 4096)
                    p.buffer_load_dwordx4(self.H[4 * st:4 * st + 4], self.vL16, rWS, sT[5],
                                          mods=f"offen offset:{(st % 4) * 1024} sc1")
                hq.append(one)

        h_loads()
        prio = self.o.get("prio", {})
        MID = 30
        for b in range(64):
            cur, oth = S[b & 1], S[(b + 1) & 1]
            if b in prio:
                p.s_setprio(prio[b])

            def e(i, j):
                for x in range(i, j):
                    p.v_exp_f32(cur[x], cur[x])
            v0r = XA if b == MID + 1 else V0
            v1p = XB if b == MID + 2 else V1
            e(0, 2)
            if b > 0:
                p.I(SM, O, v1p, oth[8:16], vIdx)
            if b != MID + 1:
                rdV(V1, b, 1)
            if b == MID:
                rdV(XA, b + 1, 0)
                rdV(XB, b + 1, 1)
            e(2, 5)
            if b < 63:
                p.I(MF, oth, K, Q, NM)
            if b < 62 and b != MID:
                rdK(K, b + 2)
            if b == 40:
                p.s_lshr_b32(sT[4], sR3, 1)
                p.s_lshl_b32(sT[4], sT[4], 8)
                p.s_add_u32(sT[4], sT[4], WS_FH)
                self.poll_issue(vP, self.vFl, sT[4])
            if b == 44:
                self.poll_check(vP, self.vFl, sT[4])
            if b >= 44 and hq:
                hq.pop(0)()
            e(5, 10)
            p.I(SM, O, v0r, cur[0:8], vIdx)
            if b == MID:
                p.wait(vm=["kv4", "kv5", "kv6", "kv7", "h"])
                self.barrier()
                rdK(K, b + 2)
                skip = self.lab("nf")
                p.s_cmp_lg_u32(sW, 0)
                p.s_cbranch_scc1(skip)
                st0 = p.fork()
                p.s_lshl_b32(t0, sRB, 8)
                p.s_lshl_b32(t1, sCB, 2)
                p.s_add_u32(t0, t0, t1)
                p.s_add_u32(t0, t0, WS_FH)
                self.flag_store(v(7), v(8), t0)
                p.label(skip)
                p.join(st0)
                self.stamp("att_mid")
            elif b < 63:
                rdV(V0, b + 1, 0)
            if MID < b <= MID + 8:
                self.w2_dma(3 + b - MID - 1)
            if b >= 44 and hq:
                hq.pop(0)()
            e(10, 16)
        p.I(SM, O, V1, S[1][8:16], vIdx)
        assert not hq
        p.s_setprio(0)
        self.stamp("att_loop")

        p.label("L_att_fin")
        p.nop(12)
        l, a, r = v(7), v(8), v(15)
        p.v_mov_b32(l, O[8])
        p.v_mov_b32(r, O[8])
        p.v_add_f32(a, Abs(O[0]), Abs(O[1]))
        p.v_permlane32_swap_b32(l, r)
        for i in range(2, 8):
            p.v_add_f32(a, Abs(O[i]), a)
        p.v_rcp_f32(r, l)
        p.s_mov_b32(t0, f32(2.0 ** 120))
        p.s_mov_b32(t1, 0x7F800000)
        p.v_cmp_nlt_f32(sV2, l, t0)
        p.v_cmp_nlt_f32("vcc", a, t1)
        for i in range(8):
            p.v_mul_f32(O[i], O[i], r)
        p.s_or_b64("vcc", "vcc", sV2)
        p.s_cmp_eq_u32(sSLOW, 0)
        p.s_cselect_b64(sV2, "vcc", 0)
        p.s_cmp_lg_u64(sV2, 0)
        p.s_cbranch_scc1("L_slow")
        for i in range(4):
            p.v_cvt_pk_bf16_f32(O[i], O[2 * i], O[2 * i + 1])
        p.s_lshl_b32(t0, sQB, 3)
        p.s_add_u32(sT[3], t0, sW)
        p.s_lshl_b32(t0, sT[3], 5)
        p.s_add_u32(sT[3], t0, sHEAD)
        p.s_lshl_b32(t0, sT[3], 10)
        p.s_add_u32(t0, t0, WS_O)
        p.buffer_store_dwordx4(O[0:4], self.vL16, rWS, t0, mods="offen sc1", tag="o")
        p.s_lshl_b32(sT[3], sT[3], 2)
        p.s_add_u32(sT[3], sT[3], WS_FO)

    def slow_path(self):
        p = self.p
        A = self.att
        S, O, NM, Q, K, V0, V1, vIdx = A["S"][0], A["O"], A["NM"], A["Q"], A["K"], A["V0"], A["V1"], A["vIdx"]
        t0, t1, t2, cnt = sT[0], sT[1], sT[2], sT[3]
        MF, SM = "v_mfma_f32_32x32x16_bf16", "v_smfmac_f32_32x32x32_bf16"
        p.label("L_slow")
        p.wait_all()
        p.nop(16)
        m = v(7)
        p.v_mov_b32(m, 0xFF800000)
        p.s_lshl_b32(t2, sHEAD, 16)
        p.s_add_u32(t0, t2, WS_K)
        p.s_mov_b32(cnt, 64)
        p.label("L_slow1")
        p.buffer_load_dwordx4(K, self.vL16, rWS, t0, mods="offen sc1")
        p.I(MF, S, K, Q, 0)
        for i in range(0, 16, 2):
            p.v_max3_f32(m, S[i], S[i + 1], m)
        p.s_add_u32(t0, t0, 1024)
        p.s_sub_u32(cnt, cnt, 1)
        p.s_cmp_lg_u32(cnt, 0)
        p.s_cbranch_scc1("L_slow1")
        p.v_mov_b32(v(8), m)
        p.v_permlane32_swap_b32(m, v(8))
        p.v_max_f32(m, m, v(8))
        for i in range(16):
            p.v_sub_f32(NM[i], 0, m)
            p.v_mov_b32(O[i], 0)
        for i in range(4):
            p.v_mov_b32(V0[i], sONES)
            p.v_mov_b32(V1[i], sONES)
        va = v(8)
        p.v_and_b32(v(7), 15, self.vL)
        p.v_lshrrev_b32(va, 5, self.vL)
        p.v_lshl_add_u32(va, va, 4, v(7))
        p.v_lshlrev_b32(va, 4, va)
        p.s_add_u32(t0, t2, WS_K)
        p.s_add_u32(t1, t2, WS_V)
        p.s_mov_b32(cnt, 64)
        p.s_mov_b32(sV2[0], 0xFFFF)
        p.s_mov_b32(sV2[1], 0xFFFF)
        p.label("L_slow2")
        p.nop(16)
        p.buffer_load_dwordx4(K, self.vL16, rWS, t0, mods="offen sc1")
        p.s_mov_b64("exec", sV2)
        p.buffer_load_dwordx4(V0, va, rWS, t1, mods="offen sc1")
        p.buffer_load_dwordx4(V1, va, rWS, t1, mods="offen offset:512 sc1")
        p.s_mov_b64("exec", -1)
        p.wait_all()
        p.I(MF, S, K, Q, NM)
        for i in range(16):
            p.v_exp_f32(S[i], S[i])
        p.I(SM, O, V0, S[0:8], vIdx)
        p.I(SM, O, V1, S[8:16], vIdx)
        p.s_add_u32(t0, t0, 1024)
        p.s_add_u32(t1, t1, 1024)
        p.s_sub_u32(cnt, cnt, 1)
        p.s_cmp_lg_u32(cnt, 0)
        p.s_cbranch_scc1("L_slow2")
        p.s_mov_b32(sSLOW, 1)
        p.s_branch("L_att_fin")

    def tail(self):
        p = self.p
        L = self.vL
        t0, t1 = sT[0], sT[1]
        H = self.H
        MF, MF16 = "v_mfma_f32_32x32x16_bf16", "v_mfma_f32_16x16x32_bf16"
        p.wait(vm=[f"w2_{i}" for i in range(11)])
        self.barrier()
        self.stamp("t2")
        for st in range(11, 19):
            self.w2_dma(st)
        mh, h, r, c = v(80), v(81), v(82), v(83)
        p.v_bfe_u32(mh, L, 4, 1)
        p.v_lshrrev_b32(h, 5, L)
        p.v_bfe_u32(r, L, 2, 2)
        p.v_and_b32(c, 3, L)
        vA = [[v(84), v(85), v(86)], [v(87), v(88), v(89)]]
        a = v(90)
        p.v_lshl_add_u32(a, h, 2, r)
        p.v_lshlrev_b32(a, 7, a)
        p.v_lshl_add_u32(a, mh, 5, a)
        p.v_lshl_add_u32(a, c, 3, a)
        p.v_lshrrev_b32(v(91), 1, r)
        p.v_lshl_add_u32(a, v(91), 6, a)
        p.s_lshr_b32(t0, sW, 1)
        p.s_lshl_b32(t0, t0, 11)
        p.v_add_u32(vA[0][0], t0, a)
        p.v_xor_b32(vA[1][0], 64, vA[0][0])
        for ct in range(2):
            p.v_add_u32(vA[ct][1], 65536, vA[ct][0])
            p.v_add_u32(vA[ct][2], 131072, vA[ct][0])
        acc = [v(16, 16), v(32, 16)]
        ring = [v(48 + 4 * i, 4) for i in range(8)]
        vWoD = v(92)
        p.v_lshrrev_b32(a, 3, L)
        p.v_bfe_u32(v(91), L, 4, 2)
        p.v_lshlrev_b32(v(91), 1, v(91))
        p.v_and_b32(v(93), 7, L)
        p.v_xor_b32(v(91), v(91), v(93))
        p.v_lshlrev_b32(v(91), 4, v(91))
        p.v_lshl_add_u32(a, a, 10, v(91))
        p.s_lshl_b32(t0, sW, 13)
        p.s_lshl_b32(t1, sC3, 7)
        p.s_add_u32(t0, t0, t1)
        p.v_add_u32(vWoD, t0, a)
        vP = v(94)
        XR = v(96, 4)
        vOut = v(95)

        def rd(i):
            st, ct = i >> 1, i & 1
            for e in range(2):
                ad = W2_SLOT[st] + e * 1024
                p.ds_read_b64_tr_b16(ring[i % 8][2 * e:2 * e + 2], vA[ct][ad >> 16], mods=f"offset:{ad & 0xFFFF}")

        def mm(i):
            st, ct = i >> 1, i & 1
            p.I(MF, acc[ct], ring[i % 8], H[4 * st:4 * st + 4], 0 if st == 0 else acc[ct])

        def post1():
            for st in range(19, 28):
                self.w2_dma(st)
            self.stamp("c1")

        def post2():
            for i in range(8):
                p.s_mov_b32(t0, i * 65536)
                self.dma(vWoD, rWO, t0, L_WO + i * 8192, "wo", m0add=sW1024)
            self.stamp("c2")

        def ex(i):
            if i == self.o.get("oflag_at", 14):
                p.wait(vm="o")
                self.flag_store(v(100), v(101), sT[3])
            if i == 24:
                p.v_and_b32(v(100), 15, L)
                p.v_lshrrev_b32(v(101), 4, L)
                p.v_lshlrev_b32(v(100), 10, v(100))
                p.v_lshl_add_u32(vOut, v(101), 3, v(100))
                p.s_lshl_b32(t0, sR3, 2)
                p.s_and_b32(t1, sW, 3)
                p.s_add_u32(t0, t0, t1)
                p.s_lshl_b32(t0, t0, 14)
                p.s_lshl_b32(t1, sC3, 7)
                p.s_add_u32(t0, t0, t1)
                p.s_lshr_b32(t1, sW, 2)
                p.s_lshl_b32(t1, t1, 6)
                p.s_add_u32(sT[6], t0, t1)
                for b in range(2):
                    p.buffer_load_dwordx2(XR[2 * b:2 * b + 2], vOut, rX, sT[6], mods=f"offen offset:{32 * b}")
            if i == 48:
                p.s_lshl_b32(t0, sR3, 1)
                p.s_bfe_u32(t1, sW, 0x10001)
                p.s_add_u32(t0, t0, t1)
                p.s_lshl_b32(t0, t0, 5)
                p.s_lshr_b32(t1, sW, 2)
                p.s_lshl_b32(t1, t1, 4)
                p.s_add_u32(sT[7], t0, t1)
                p.s_lshl_b32(sT[4], sT[7], 2)
                p.s_add_u32(sT[4], sT[4], WS_FO)
                self.poll_issue(vP, self.vFl, sT[4])

        def w(lo, hi):
            return lambda: p.wait(vm=[f"w2_{i}" for i in range(lo, hi)])

        bars = {22: (2, w(11, 19), post1), 38: (2, w(19, 28), post2)}
        self.gemm_stream(56, rd, mm, 6, bars, ex)
        self.stamp("down_mm")
        self.poll_check(vP, self.vFl, sT[4])
        self.stamp("o_seen")
        OF = v(48, 32)
        vO = v(90)
        g4 = v(91)
        p.v_lshrrev_b32(g4, 4, L)
        p.v_and_b32(v(100), 15, L)
        p.v_and_b32(v(101), 1, g4)
        p.v_lshl_add_u32(v(101), v(101), 5, v(100))
        p.s_and_b32(t0, sW, 1)
        p.s_lshl_b32(t0, t0, 4)
        p.v_add_u32(v(101), t0, v(101))
        p.v_lshlrev_b32(v(101), 4, v(101))
        p.v_lshl_add_u32(vO, h, 10, v(101))
        p.s_lshl_b32(t0, sT[7], 10)
        p.s_add_u32(t0, t0, WS_O)
        for j in range(8):
            if j and j % 2 == 0:
                p.s_add_u32(t0, t0, 4096)
            p.buffer_load_dwordx4(OF[4 * j:4 * j + 4], vO, rWS, t0, mods=f"offen offset:{(j % 2) * 2048} sc1")
        p.wait(vm="wo")
        self.barrier()
        self.stamp("c3")
        tk = v(102)
        p.v_and_b32(tk, 31, L)
        p.s_and_b32(t0, sW, 1)
        p.s_lshl_b32(t0, t0, 5)
        p.v_add_u32(tk, t0, tk)
        p.v_xor_b32(v(103), h, v(100))
        p.v_lshlrev_b32(v(103), 4, v(103))
        p.v_lshl_add_u32(tk, tk, 8, v(103))
        p.s_lshr_b32(t0, sW, 1)
        p.s_lshl_b32(t0, t0, 14)
        p.s_add_u32(t0, t0, L_RED)
        p.v_add_u32(tk, t0, tk)
        for ct in range(2):
            for j in range(4):
                k = (8 * ct + 2 * j) << 4
                ad = v(136 + 4 * ct + j)
                p.v_xor_b32(ad, k, tk)
                p.ds_write_b128(ad, acc[ct][4 * j:4 * j + 4])
        WO = v(128, 128)
        vB = [v(84), v(85), v(86), v(87)]
        hh = v(88)
        p.v_and_b32(hh, 1, g4)
        p.v_lshlrev_b32(a, 4, h)
        p.v_lshl_add_u32(a, hh, 2, a)
        p.v_add_u32(a, a, r)
        p.v_lshlrev_b32(a, 7, a)
        p.v_lshl_add_u32(a, c, 3, a)
        p.v_lshrrev_b32(v(89), 1, r)
        p.v_lshl_add_u32(v(89), hh, 1, v(89))
        p.s_lshr_b32(t0, sW, 2)
        p.s_lshl_b32(t1, t0, 1)
        p.v_xor_b32(v(89), t1, v(89))
        p.v_lshl_add_u32(a, v(89), 5, a)
        p.s_lshl_b32(t1, t0, 15)
        p.v_add_u32(vB[0], t1, a)
        for ct in range(1, 4):
            p.v_xor_b32(vB[ct], 32 * ct, vB[0])
        vR = [v(92), v(93)]
        p.s_lshl_b32(t1, t0, 3)
        p.v_add_u32(v(89), t1, g4)
        p.v_xor_b32(v(89), v(89), v(100))
        p.v_lshlrev_b32(v(89), 4, v(89))
        p.v_lshl_add_u32(v(89), v(100), 8, v(89))
        p.s_and_b32(t1, sW, 3)
        p.s_lshl_b32(t1, t1, 12)
        p.s_add_u32(t1, t1, L_RED)
        p.v_add_u32(vR[0], t1, v(89))
        p.v_xor_b32(vR[1], 64, vR[0])
        self.barrier()
        self.stamp("c4")
        PR = v(16, 32)
        for kq in range(4):
            for b in range(2):
                p.ds_read_b128(PR[8 * kq + 4 * b:8 * kq + 4 * b + 4], vR[b], mods=f"offset:{kq * 16384}")

        def wo_rd(j):
            for ct in range(4):
                for e in range(2):
                    d = WO[16 * j + 4 * ct + 2 * e:16 * j + 4 * ct + 2 * e + 2]
                    p.ds_read_b64_tr_b16(d, vB[ct], mods=f"offset:{L_WO + j * 4096 + e * 1024}")

        wo_rd(0)
        G = PR[0:8]
        tmp = [v(104 + i) for i in range(8)]
        p.s_mov_b32(t0, f32(-LOG2E))
        for i in range(8):
            p.v_add_f32(PR[i], PR[i], PR[8 + i])
            p.v_add_f32(PR[16 + i], PR[16 + i], PR[24 + i])
        wo_rd(1)
        for i in range(8):
            p.v_add_f32(G[i], PR[i], PR[16 + i])
        for i in range(8):
            p.v_mul_f32(tmp[i], t0, G[i])
        wo_rd(2)
        for i in range(8):
            p.v_exp_f32(tmp[i], tmp[i])
        wo_rd(3)
        for i in range(8):
            p.v_add_f32(tmp[i], 1.0, tmp[i])
        wo_rd(4)
        for i in range(8):
            p.v_rcp_f32(tmp[i], tmp[i])
        wo_rd(5)
        for i in range(8):
            p.v_mul_f32(G[i], G[i], tmp[i])
        wo_rd(6)
        XU = [v(112 + i) for i in range(8)]
        for i in range(4):
            p.v_lshlrev_b32(XU[2 * i], 16, XR[i])
            p.v_and_b32(XU[2 * i + 1], sMASK, XR[i])
        wo_rd(7)
        vEw, vEr = v(92), v(93)
        p.s_lshl_b32(t0, sW, 11)
        p.s_add_u32(t0, t0, L_EX)
        p.v_add_u32(vEw, t0, self.vL16)
        p.s_xor_b32(t1, sW, 4)
        p.s_lshl_b32(t1, t1, 11)
        p.s_add_u32(t1, t1, L_EX)
        p.v_add_u32(vEr, t1, self.vL16)
        self.stamp("g_done")
        SA = v(24, 16)
        for j in range(8):
            for ct in (2, 3, 0, 1):
                d = SA[4 * ct:4 * ct + 4]
                p.I(MF16, d, WO[16 * j + 4 * ct:16 * j + 4 * ct + 4], OF[4 * j:4 * j + 4], 0 if j == 0 else d)
        self.stamp("wo_mm")
        for b in range(2):
            p.ds_write_b128(vEw, SA[8 + 4 * b:12 + 4 * b], mods=f"offset:{b * 1024}")
        self.barrier()
        for b in range(2):
            p.ds_read_b128(SA[8 + 4 * b:12 + 4 * b], vEr, mods=f"offset:{b * 1024}")
        for i in range(8):
            p.v_add_f32(SA[i], SA[i], SA[8 + i])
        for i in range(8):
            p.v_fma_f32(SA[i], SA[i], G[i], XU[i])
        for i in range(4):
            p.v_cvt_pk_bf16_f32(SA[i], SA[2 * i], SA[2 * i + 1])
        for b in range(2):
            p.buffer_store_dwordx2(SA[2 * b:2 * b + 2], vOut, rOUT, sT[6], mods=f"offen offset:{32 * b}")
        p.s_or_b32(t0, sG, sW)
        p.s_cmp_lg_u32(t0, 0)
        p.s_cbranch_scc1("L_noep")
        p.s_mov_b32(t0, WS_E)
        self.flag_store(v(100), v(101), t0)
        p.label("L_noep")
        self.stamp("end")
        if self.o.get("stamp"):
            p.wait_all()
            p.raw("    s_memrealtime s[100:101]")
            p.wait_smem()
            p.s_lshl_b32(t0, sG, 3)
            p.s_add_u32(t0, t0, sW)
            p.s_lshl_b32(t0, t0, 7)
            p.s_add_u32(t0, t0, WS_STAMP)
            p.v_mov_b32(v(1), 0)
            n = len(self.o["stamp_names"])
            vals = STAMP_REGS[:n] + [s(98), s(100)]
            for i, x in enumerate(vals):
                p.v_mov_b32(v(2), x)
                p.buffer_store_dword(v(2), v(1), rWS, t0, mods=f"offen offset:{4 * i}")
                p.wait_all()
        if self.o.get("padto"):
            p.wait_all()
            p.label("L_pad")
            p.raw("    s_memrealtime s[100:101]")
            p.wait_smem()
            p.s_sub_u32(t0, s(100), s(98))
            p.s_cmp_lt_u32(t0, self.o["padto"])
            p.s_cbranch_scc1("L_pad")
        p.label("L_exit")
        p.s_endpgm()

    def build(self):
        p = self.p
        self.setup()
        self.layernorm()
        self.gemm1_setup()
        p.s_cmp_ge_u32(sW, 4)
        p.s_cbranch_scc1("L_hf1")
        st = p.fork()
        self.gemm1(0)
        p.s_branch("L_att")
        end0 = p.fork()
        p.restore(st)
        p.label("L_hf1")
        self.gemm1(1)
        p.label("L_att")
        p.join(end0)
        self.attention()
        self.tail()
        self.slow_path()
        head = open("cdna_kernels/" + NAME[:-7] + ".s.ref").read().split("; Override launch")[0]
        return (head
                + f"; @launch grid=(256,1,1) block=(512,1,1) lds={LDS_BYTES}\n"
                + "; generated by gen/gen.py: one persistent launch, phases LN+QKV | FFN up | attention | FFN down + out projection\n"
                + '.amdgcn_target "amdgcn-amd-amdhsa--gfx950"\n.text\n'
                + f".globl {NAME}\n.p2align 8\n.type {NAME},@function\n{NAME}:\n"
                + p.text()
                + '.section .rodata,"a"\n.p2align 6\n'
                + f".amdhsa_kernel {NAME}\n"
                + "  .amdhsa_next_free_vgpr 256\n  .amdhsa_next_free_sgpr 102\n  .amdhsa_accum_offset 256\n"
                + "  .amdhsa_group_segment_fixed_size 0\n  .amdhsa_kernarg_size 80\n"
                + "  .amdhsa_user_sgpr_count 2\n  .amdhsa_user_sgpr_kernarg_segment_ptr 1\n"
                + "  .amdhsa_system_sgpr_workgroup_id_x 1\n.end_amdhsa_kernel\n")


def generate(**opt):
    if opt.get("stamp"):
        opt["stamp_names"] = {}
    g = Gen(opt)
    text = g.build()
    return text, g


if __name__ == "__main__":
    out = sys.argv[1] if len(sys.argv) > 1 else "cdna_kernels/" + NAME[:-7] + ".s"
    opt = eval(sys.argv[2]) if len(sys.argv) > 2 else {}
    text, g = generate(**opt)
    open(out, "w").write(text)
    print("written", out, "instr counts", g.p.count, "nop states", g.p.nops, file=sys.stderr)
    if opt.get("stamp"):
        print(g.o["stamp_names"], file=sys.stderr)
```

```python
import copy
import re


class R:
    __slots__ = ("k", "i", "n")

    def __init__(self, k, i, n=1):
        self.k, self.i, self.n = k, i, n

    def __getitem__(self, x):
        if isinstance(x, slice):
            a = x.start or 0
            b = self.n if x.stop is None else x.stop
            assert 0 <= a < b <= self.n, (self, x)
            return R(self.k, self.i + a, b - a)
        assert 0 <= x < self.n, (str(self), x)
        return R(self.k, self.i + x, 1)

    def __str__(self):
        if self.n == 1:
            return f"{self.k}{self.i}"
        return f"{self.k}[{self.i}:{self.i + self.n - 1}]"

    __repr__ = __str__

    def regs(self):
        return {(self.k, self.i + j) for j in range(self.n)}


def v(i, n=1):
    assert 0 <= i and i + n <= 256
    return R("v", i, n)


def s(i, n=1):
    assert 0 <= i and i + n <= 102
    return R("s", i, n)


class Neg:
    def __init__(self, r):
        self.r = r

    def __str__(self):
        return f"-{self.r}"


class Abs:
    def __init__(self, r):
        self.r = r

    def __str__(self):
        return f"abs({self.r})"


SPECIAL = {"vcc": {("x", "vcc")}, "m0": {("x", "m0")}, "exec": {("x", "exec")}, "exec_hi": {("x", "exec")}}


def regs_of(o):
    if isinstance(o, R):
        return o.regs()
    if isinstance(o, (Neg, Abs)):
        return regs_of(o.r)
    if isinstance(o, str) and o in SPECIAL:
        return set(SPECIAL[o])
    return set()


def fmt(o):
    if isinstance(o, int):
        return str(o) if -16 <= o <= 64 else hex(o & 0xFFFFFFFF)
    if isinstance(o, float):
        return repr(o)
    return str(o)


TRANS = ("v_exp_f32", "v_log_f32", "v_rcp_f32", "v_rsq_f32", "v_sqrt_f32", "v_sin_f32", "v_cos_f32")


class Path:
    def __init__(self):
        self.vm = []
        self.lg = []
        self.pend = {}
        self.hist = []
        self.seen = {}
        self.attr = {}


class Prog:
    def __init__(self):
        self.lines = []
        self.paths = [Path()]
        self.uid = 0
        self.nrec = 0
        self.nops = 0
        self.count = {}
        self.optional = set()
        self.expect = {}

    def fork(self):
        return copy.deepcopy(self.paths)

    def restore(self, st):
        self.paths = copy.deepcopy(st)

    def join(self, st):
        self.paths = self.paths + copy.deepcopy(st)

    def split(self, key, val):
        yes, no = [], []
        for p in self.paths:
            k = p.attr.get(key)
            if k is None:
                q = copy.deepcopy(p)
                p.attr[key] = val
                q.attr[key] = not val
                yes.append(p)
                no.append(q)
            elif k == val:
                yes.append(p)
            else:
                no.append(p)
        assert yes, f"no path with {key} == {val}"
        self.paths = yes
        return no

    def raw(self, text):
        self.lines.append(text)

    def comment(self, text):
        self.lines.append(f"    ; {text}")

    def label(self, name):
        self.lines.append(f"{name}:")

    def _push(self, rec):
        self.nrec += 1
        rec["id"] = self.nrec
        for p in self.paths:
            p.hist.append(rec)
            if len(p.hist) > 40:
                del p.hist[0]

    def nop(self, n):
        while n > 0:
            k = min(n, 16)
            self.lines.append(f"    s_nop {k - 1}")
            self._push(dict(cls="nop", ws=k, defs=set(), uses=set()))
            n -= k

    def _emit_wait(self, vm=None, lg=None):
        parts = []
        if vm is not None:
            vm = min(vm, 63)
            parts.append(f"vmcnt({vm})")
            for p in self.paths:
                if len(p.vm) > vm:
                    done = p.vm[: len(p.vm) - vm]
                    p.vm = p.vm[len(p.vm) - vm:]
                    ids = {u for u, _ in done}
                    p.pend = {r: x for r, x in p.pend.items() if not (x[0] == "vm" and x[1] in ids)}
        if lg is not None:
            lg = min(lg, 15)
            parts.append(f"lgkmcnt({lg})")
            for p in self.paths:
                if len(p.lg) > lg:
                    done = p.lg[: len(p.lg) - lg]
                    p.lg = p.lg[len(p.lg) - lg:]
                    ids = {u for u, _ in done}
                    p.pend = {r: x for r, x in p.pend.items() if not (x[0] == "lg" and x[1] in ids)}
        if parts:
            self.lines.append("    s_waitcnt " + " ".join(parts))
            self._push(dict(cls="wait", ws=1, defs=set(), uses=set()))
            self._dedupe()

    def _dedupe(self):
        if len(self.paths) < 2:
            return
        keep, seen = [], set()
        for p in self.paths:
            key = (tuple(p.vm), tuple(p.lg), tuple(sorted(p.pend.items())), tuple(sorted(p.seen.items())), tuple(sorted(p.attr.items())),
                   tuple(h.get("id") for h in p.hist[-24:]))
            if key not in seen:
                seen.add(key)
                keep.append(p)
        self.paths = keep

    def _need(self, which, pred):
        need = None
        for p in self.paths:
            q = p.vm if which == "vm" else p.lg
            idx = [i for i, e in enumerate(q) if pred(e)]
            if idx:
                n = len(q) - idx[-1] - 1
                need = n if need is None else min(need, n)
        return need

    def wait(self, vm=(), lg=()):
        vm = (vm,) if isinstance(vm, str) else vm
        lg = (lg,) if isinstance(lg, str) else lg
        for t in list(vm) + list(lg):
            if t != "*":
                want = self.expect.get(t)
                for p in self.paths:
                    got = p.seen.get(t, 0)
                    if got == 0 and t in self.optional:
                        continue
                    assert got > 0 and (want is None or got == want), f"wait for tag {t}: issued {got}, expected {want}"
        a = self._need("vm", lambda e: "*" in vm or e[1] in vm) if vm else None
        b = self._need("lg", lambda e: "*" in lg or e[1] in lg) if lg else None
        self._emit_wait(a, b)

    def wait_all(self):
        self._emit_wait(0, 0)

    def wait_smem(self):
        self._emit_wait(None, 0)

    def _auto_wait(self, touched):
        a = b = None
        for p in self.paths:
            for r in touched:
                x = p.pend.get(r)
                if x is None:
                    continue
                q = p.vm if x[0] == "vm" else p.lg
                i = [j for j, e in enumerate(q) if e[0] == x[1]][0]
                n = len(q) - i - 1
                if x[0] == "vm":
                    a = n if a is None else min(a, n)
                else:
                    b = n if b is None else min(b, n)
        self._emit_wait(a, b)

    def _hazard(self, rec):
        need = 0
        cls, defs, uses = rec["cls"], rec["defs"], rec["uses"]
        isvalu = cls in ("valu", "trans", "dot", "perm", "dpp", "rdlane")
        ismem = cls in ("vld", "vst", "dma", "dsr", "dsw")
        vuses = {r for r in uses if r[0] == "v"}
        vdefs = {r for r in defs if r[0] == "v"}
        suses = {r for r in uses if r[0] == "s" or r == ("x", "vcc")}
        for p in self.paths:
            dist = 0
            for h in reversed(p.hist):
                hc = h["cls"]
                req = 0
                hval = hc in ("valu", "trans", "dot", "perm", "dpp", "rdlane")
                if hval:
                    hv = {r for r in h["defs"] if r[0] == "v"}
                    hs = {r for r in h["defs"] if r[0] == "s" or r == ("x", "vcc")}
                    if cls == "mfma" and hv & vuses:
                        req = max(req, 3 if hc == "dot" else 2)
                    if hc == "trans" and isvalu and cls != "trans" and hv & vuses:
                        req = max(req, 1)
                    if cls in ("perm", "dpp") and hv & vuses:
                        req = max(req, 2)
                    if cls == "rdlane" and hv & vuses:
                        req = max(req, 1)
                    if hc == "dot" and hv & (vuses | vdefs):
                        same = cls == "dot" and rec["op"] == h["op"] and not (hv & rec["ab"])
                        if not same:
                            req = max(req, 3)
                    if hs & suses and isvalu:
                        req = max(req, 2)
                    if hs & suses and cls in ("vld", "vst", "dma"):
                        req = max(req, 5)
                if hc == "mfma":
                    D, ps = h["D"], h["passes"]
                    big = {4: 8, 8: 12}[ps]
                    if cls == "mfma":
                        if D & rec["ab"]:
                            req = max(req, big)
                        if D & rec["C"]:
                            if not (rec["C"] == D and rec["passes"] == ps):
                                req = max(req, big - 2)
                        elif D & rec["D"] and not (rec["D"] == D and rec["passes"] == ps):
                            req = max(req, big - 2)
                    elif (isvalu or ismem) and D & (vuses | vdefs):
                        req = max(req, big)
                    if isvalu and h["C"] & vdefs:
                        req = max(req, {4: 3, 8: 7}[ps])
                if hc == "salu" and ("x", "m0") in h["defs"] and cls == "dma":
                    req = max(req, 1)
                if hc == "vst" and h.get("wide") and h["data"] & vdefs:
                    req = max(req, 2)
                need = max(need, req - dist)
                dist += h["ws"]
                if dist >= 20:
                    break
        if need > 0:
            self.nops += need
            self.nop(need)

    def I(self, op, *ops, mods="", tag=None):
        rec = dict(op=op, ws=1)
        defs, uses = set(), set()
        if op.startswith("v_mfma") or op.startswith("v_smfmac"):
            cls = "mfma"
            D = regs_of(ops[0])
            ab = regs_of(ops[1]) | regs_of(ops[2])
            if op.startswith("v_smfmac"):
                ab |= regs_of(ops[3])
                C = set(D)
            else:
                C = regs_of(ops[3])
            rec.update(D=D, ab=ab, C=C, passes=8 if "32x32" in op else 4)
            defs, uses = D, ab | C
        elif op.startswith("v_cmp"):
            cls = "valu"
            defs = regs_of(ops[0])
            for o in ops[1:]:
                uses |= regs_of(o)
        elif op.startswith("v_permlane"):
            cls = "perm"
            defs = regs_of(ops[0]) | regs_of(ops[1])
            uses = set(defs)
        elif op.startswith("v_readfirstlane") or op.startswith("v_readlane"):
            cls = "rdlane"
            defs, uses = regs_of(ops[0]), regs_of(ops[1])
        elif op.startswith("v_"):
            base = re.sub(r"_(e32|e64|dpp|sdwa)$", "", op)
            cls = "trans" if base in TRANS else "dot" if op.startswith("v_dot") else "dpp" if op.endswith("_dpp") else "valu"
            defs = regs_of(ops[0])
            for o in ops[1:]:
                uses |= regs_of(o)
            if op.startswith("v_fmac") or op.startswith("v_dot2c"):
                uses |= defs
            if cls == "dot":
                rec["ab"] = regs_of(ops[1]) | regs_of(ops[2])
        elif op.startswith("buffer_load"):
            if "lds" in mods.split():
                cls = "dma"
                for o in ops:
                    uses |= regs_of(o)
                uses |= {("x", "m0")}
            else:
                cls = "vld"
                defs = regs_of(ops[0])
                for o in ops[1:]:
                    uses |= regs_of(o)
        elif op.startswith("buffer_store"):
            cls = "vst"
            for o in ops:
                uses |= regs_of(o)
            rec["wide"] = op.endswith("x4") or op.endswith("x3")
            rec["data"] = regs_of(ops[0])
        elif op.startswith("ds_read"):
            cls = "dsr"
            defs = regs_of(ops[0])
            uses = regs_of(ops[1])
        elif op.startswith("ds_write"):
            cls = "dsw"
            for o in ops:
                uses |= regs_of(o)
        elif op.startswith("s_"):
            cls = "salu"
            if op.startswith("s_cmp") or op.startswith("s_cbranch") or op in (
                    "s_branch", "s_barrier", "s_setprio", "s_endpgm", "s_sleep", "s_bitcmp1_b32", "s_bitcmp0_b32"):
                for o in ops:
                    uses |= regs_of(o)
            else:
                defs = regs_of(ops[0])
                for o in ops[1:]:
                    uses |= regs_of(o)
        else:
            raise ValueError(op)
        rec.update(cls=cls, defs=defs, uses=uses)
        self._auto_wait({r for r in (defs | uses) if r[0] == "v"})
        self._hazard(rec)
        text = "    " + op + (" " + ", ".join(fmt(o) for o in ops) if ops else "") + (" " + mods if mods else "")
        self.lines.append(text)
        self.count[cls] = self.count.get(cls, 0) + 1
        self._push(rec)
        if cls in ("vld", "vst", "dma", "dsr", "dsw"):
            self.uid += 1
            which = "vm" if cls in ("vld", "vst", "dma") else "lg"
            for p in self.paths:
                (p.vm if which == "vm" else p.lg).append((self.uid, tag))
                if tag:
                    p.seen[tag] = p.seen.get(tag, 0) + 1
                if cls in ("vld", "dsr"):
                    for r in defs:
                        p.pend[r] = (which, self.uid)
                assert len(p.vm) <= 63, "more than 63 vector-memory operations in flight"

    def __getattr__(self, name):
        if re.match(r"^(v|s|ds|buffer)_", name):
            return lambda *a, **k: self.I(name, *a, **k)
        raise AttributeError(name)

    def text(self):
        return "\n".join(self.lines) + "\n"
```

```python
import struct
import sys

from asmdsl import Abs, Neg, Prog, s, v

NAME = "recurrent_scan__softmax_full_mha__glu_gated_swiglu__prompt_kernel"


def f32(x):
    return struct.unpack("<I", struct.pack("<f", x))[0]


WS_E = 0
WS_FQ = 0x1000
WS_FH = 0x2000
WS_FO = 0x4000
WS_Q = 0x10000
WS_K = WS_Q + 0x200000
WS_V = WS_K + 0x200000
WS_O = WS_V + 0x200000
WS_H = WS_O + 0x200000
WS_STAMP = WS_H + 64 * 112 * 1024
WS_END = WS_STAMP + 256 * 8 * 128

LDS_BYTES = 163840
L_XST = 0
L_WQ = 65536
UP_SLOT = ([65536 + 8192 * i for i in range(3)] + [8192 * i for i in range(8)]
           + [98304 + 8192 * i for i in range(8)] + [90112]
           + [65536 + 8192 * i for i in range(3)] + [8192 * i for i in range(8)] + [98304])
L_RS = 90112
VB = 1056
CH = 8192 + 8 * VB
CH_BASE = [LDS_BYTES - 3 * CH + CH * i for i in range(3)] + [4 * CH] + [CH * i for i in range(4)]
SL_F = [5 * CH + 8192 * i for i in range(3)]
SL_P = [4 * CH, 4 * CH + 8192] + [5 * CH + 8192 * (3 + i) for i in range(6)]
SL_R = [8192 * i for i in range(8)]
W2_SLOT = SL_F + SL_P + SL_R + SL_F + SL_P[:6]
assert CH_BASE[0] >= 106496 and SL_F[2] + 8192 <= CH_BASE[0] and SL_P[7] + 8192 <= LDS_BYTES and (4 * CH) % 256 == 0 and (5 * CH) % 256 == 0
L_WO = 0
L_RED = 4 * CH
L_EX = L_RED + 65536

LOG2E = 1.4426950408889634
QSCALE = 0.25 * LOG2E
M_OFF = 100.0
SPIN_MAX = 1 << 18
PRIO_DEFAULT = {-1: 3, 18: 2, 26: 1, 29: 0, 31: 3, 50: 2, 58: 1, 61: 0}
PF_DEFAULT = dict(w1=(4, 'b2'), w3=(5, 'b2'))

sKARG = s(0, 2)
sG = s(2)
pX, pWQ, pWO, pW1, pW3, pW2, pOUT, pWS = s(4, 2), s(6, 2), s(8, 2), s(12, 2), s(14, 2), s(16, 2), s(18, 2), s(22, 2)
rX, rWQ, rWO, rW1, rW3, rW2, rOUT, rWS = (s(24 + 4 * i, 4) for i in range(8))
sW, sRB, sCB, sHEAD, sQB, sEP = s(56), s(57), s(58), s(59), s(60), s(63)
sR3, sC3 = sHEAD, sQB
sT = [s(64 + i) for i in range(8)]
sA, sB, sUPk = s(72), s(73), s(74)
sW1024, sW1040, sKV = s(75), s(76), s(77)
sSLOW, sSPIN = s(78), s(79)
sMASK, sONES = s(61), s(62)
sV2 = s(80, 2)
sPAR, sC10, sC01 = s(82), s(83), s(3)
sROT, sWL, sROT2 = s(20), s(21), s(10)
rWU = s(84, 4)
STAMP_REGS = [s(88 + i) for i in range(10)] + [s(4 + i) for i in range(6)] + [s(11 + i) for i in range(9)]


class Gen:
    def __init__(self, opt):
        self.o = opt
        self.p = Prog()
        self.nstamp = 0
        e = self.p.expect
        e.update({f"wq{i}": 6 for i in range(4)})
        self.p.optional |= {f"wq{i}" for i in range(4)}
        self.p.optional |= {f"up{i}" for i in range(11)}
        e.update({f"kv{i}": 2 for i in range(8)})
        e.update({f"w2_{i}": 1 for i in range(28)})
        e.update({"wo": 8, "o": 1})
        self.p.optional.add("h")
        self.nlab = 0

    def stamp(self, name):
        if not self.o.get("stamp"):
            return
        if name in self.o.get("nostamp", ()):
            return
        if "only" in self.o and name not in self.o["only"] and name != "entry":
            return
        if "only" not in self.o and (name.startswith("pre") or name.startswith("wt")):
            return
        p = self.p
        i = self.o["stamp_names"].setdefault(name, len(self.o["stamp_names"]))
        p.raw("    s_memrealtime s[100:101]" if self.o["stamp"] == "rt" else "    s_memtime s[100:101]")
        p.wait_smem()
        p.s_mov_b32(STAMP_REGS[i], s(100))

    def srd(self, r, ptr, nbytes):
        p = self.p
        p.s_mov_b32(r[0], ptr[0])
        p.s_mov_b32(r[1], ptr[1])
        p.s_mov_b32(r[2], nbytes)
        p.s_mov_b32(r[3], 0x00020000)

    def lab(self, base):
        self.nlab += 1
        return f"L_{base}_{self.nlab}"

    def barrier(self):
        self.p.wait(lg="*")
        self.p.s_barrier()

    def dma(self, voff, srd, soff, m0val, tag, m0add=None, sc1=False):
        p = self.p
        if m0add is None:
            p.s_mov_b32("m0", m0val)
        else:
            p.s_add_u32("m0", m0add, m0val)
        p.buffer_load_dwordx4(voff, srd, soff, mods="offen sc1 lds" if sc1 else "offen lds", tag=tag)

    def poll_issue(self, dst, vaddr, soff):
        self.p.buffer_load_dword(dst, vaddr, rWS, soff, mods="offen sc1")

    def poll_check(self, dst, vaddr, soff):
        p = self.p
        ok, again = self.lab("ok"), self.lab("poll")
        p.v_cmp_ne_u32("vcc", sEP, dst)
        p.s_cbranch_vccz(ok)
        p.s_mov_b32(sSPIN, SPIN_MAX)
        p.label(again)
        p.raw(f"    s_sleep {self.o.get('backoff', 4)}")
        p.raw(f"    buffer_load_dword {dst}, {vaddr}, {rWS}, {soff} offen sc1")
        p.raw("    s_waitcnt vmcnt(0)")
        p.raw(f"    v_cmp_ne_u32 vcc, {sEP}, {dst}")
        p.raw(f"    s_cbranch_vccz {ok}")
        p.raw(f"    s_sub_u32 {sSPIN}, {sSPIN}, 1")
        p.raw(f"    s_cmp_lg_u32 {sSPIN}, 0")
        p.raw(f"    s_cbranch_scc1 {again}")
        p.label(ok)

    def flag_store(self, vtmp, vtmp2, soff):
        p = self.p
        p.v_mov_b32(vtmp, sEP)
        p.v_mov_b32(vtmp2, 0)
        p.s_mov_b64("exec", 1)
        p.buffer_store_dword(vtmp, vtmp2, rWS, soff, mods="offen sc1", tag="flag")
        p.s_mov_b64("exec", -1)

    def wq_dma(self, kk):
        p = self.p
        for q in range(3):
            def one(q=q):
                if q == 0:
                    p.s_add_u32(sT[6], sT[4], 4 * kk)
                    p.s_and_b32(sT[6], sT[6], 31)
                    p.s_mul_i32(sT[6], sT[6], 49152)
                    p.s_add_u32(sT[6], sT[6], sT[5])
                self.dma(self.pat[q], rWQ, sT[6], L_WQ + kk * 4 * 3072 + q * 1024, f"wq{kk // 2}", m0add=sT[7])
            self.q.append(one)

    def only(self, lo_half, body):
        p = self.p
        skip = self.lab("only")
        p.s_cmp_ge_u32(sW, 4)
        if lo_half:
            p.s_cbranch_scc1(skip)
        else:
            p.s_cbranch_scc0(skip)
        st0 = p.split("lo", lo_half)
        body()
        p.label(skip)
        p.join(st0)

    def when(self, key, cmp_op, val, body):
        p = self.p
        skip = self.lab("when")
        p.I(f"s_cmp_{cmp_op}_u32", sW, val)
        p.s_cbranch_scc0(skip)
        st0 = p.split(key[0], key[1])
        body()
        p.label(skip)
        p.join(st0)

    def prefetch(self, wave, srd, nlines, tmp, dst):
        p = self.p
        skip = self.lab("pf")
        p.s_cmp_lg_u32(sW, wave)
        p.s_cbranch_scc1(skip)
        st0 = p.fork()
        p.s_mul_i32(sT[2], sG, nlines * 128)
        p.v_lshlrev_b32(tmp, 7, self.vL)
        p.s_mov_b64("exec", (1 << nlines) - 1 if nlines < 32 else -1)
        if 32 <= nlines < 64:
            p.s_mov_b32("exec_hi", (1 << (nlines - 32)) - 1)
        p.buffer_load_dword(dst, tmp, srd, sT[2], mods="offen")
        p.s_mov_b64("exec", -1)
        p.label(skip)
        p.join(st0)

    def pf_at(self, where):
        for nm_, (wv, at) in self.o.get("pf", PF_DEFAULT).items():
            if at == where:
                srd_, n_ = {"wq": (rWQ, 48), "w1": (rW1, 56), "w3": (rW3, 56), "w2": (rW2, 56)}[nm_]
                self.prefetch(wv, srd_, n_, v(29), v(30))

    def drip(self, n=1):
        for _ in range(n):
            if self.q:
                self.q.pop(0)()

    def gemm_stream(self, n, read, mfma, depth, bars=None, extra=None):
        p = self.p
        bars = bars or {}
        passed = set()
        st = {"nxt": 0}

        def issue(i):
            while st["nxt"] < n and st["nxt"] <= i + depth and not any(
                    f <= st["nxt"] and f not in passed for f in bars):
                read(st["nxt"])
                st["nxt"] += 1

        for i in range(-depth, n):
            for f, (lead, pre, post) in sorted(bars.items()):
                if f not in passed and i == f - lead:
                    assert st["nxt"] == min(f, n), (st["nxt"], f)
                    if pre:
                        pre()
                    self.barrier()
                    passed.add(f)
                    issue(i)
                    if post:
                        post()
            if i >= 0:
                mfma(i)
            issue(i)
            if extra and i >= 0:
                extra(i)

    def entry(self):
        p = self.p
        p.s_cmp_ge_u32(sG, 256)
        p.s_cbranch_scc1("L_exit")
        if self.o.get("stamp") or self.o.get("padto"):
            p.raw("    s_memrealtime s[98:99]")
        self.stamp("entry")
        p.raw("    s_load_dwordx16 s[4:19], s[0:1], 0")
        p.raw("    s_load_dwordx4 s[20:23], s[0:1], 64")
        self.vL = v(0)
        p.v_lshrrev_b32(v(1), 6, v(0))
        p.v_and_b32(v(0), 63, v(0))
        p.v_readfirstlane_b32(sW, v(1))
        t0, t1, t2 = sT[0], sT[1], sT[2]
        p.s_and_b32(t0, sG, 7)
        p.s_bfe_u32(sQB, sG, 0x30003)
        p.s_lshr_b32(t1, sG, 6)
        p.s_lshl_b32(t2, t0, 2)
        p.s_add_u32(sHEAD, t2, t1)
        p.s_and_b32(sT[3], t0, 3)
        p.s_and_b32(sT[4], sQB, 3)
        p.s_lshl_b32(t2, sT[3], 2)
        p.s_add_u32(sRB, t2, sT[4])
        p.s_lshr_b32(t2, t0, 2)
        p.s_lshl_b32(t2, t2, 3)
        p.s_lshr_b32(t1, sG, 5)
        p.s_add_u32(sCB, t2, t1)
        self.vXa = v(1)
        p.v_lshrrev_b32(v(2), 2, self.vL)
        p.v_and_b32(v(3), 3, self.vL)
        p.v_lshlrev_b32(v(2), 10, v(2))
        p.v_lshl_add_u32(self.vXa, v(3), 4, v(2))
        p.s_add_u32(t0, sW, sCB)
        p.s_and_b32(sT[5], t0, 7)
        p.s_lshl_b32(t0, sT[4], 2)
        p.s_add_u32(sT[6], t0, sT[3])
        p.s_lshl_b32(t0, sRB, 17)
        p.s_lshl_b32(t1, sT[5], 14)
        p.s_add_u32(t0, t0, t1)
        p.s_lshl_b32(t1, sT[6], 6)
        p.s_add_u32(sB, t0, t1)
        p.s_add_u32(sA, sB, 1024)
        p.s_mov_b32(rX[2], 2048 * 1024 + 1024)
        p.s_mov_b32(rX[3], 0x00020000)
        self.X = v(64, 64)
        self.XF = v(128, 128)

    def xload(self, i):
        p = self.p
        if i:
            p.s_cmp_ge_u32(sROT, 16 - i)
            p.s_cselect_b32(sT[2], sB, sA)
        p.buffer_load_dwordx4(self.X[4 * i:4 * i + 4], self.vXa, rX, sT[2] if i else sA, mods=f"offen offset:{64 * i}")

    def addr_setup(self, hf):
        p = self.p
        L = self.vL
        t0, t1, t2 = sT[0], sT[1], sT[2]
        p.raw(f"    s_load_dword {sEP}, {pWS}, {WS_E}")
        p.s_mov_b32(sMASK, 0xFFFF0000)
        p.s_mov_b32(sONES, 0x3F803F80)
        p.s_mov_b32(sC10, 0x00003F80)
        p.s_mov_b32(sC01, 0x3F800000)
        p.s_lshl_b32(sW1024, sW, 10)
        p.s_mul_i32(sW1040, sW, VB)
        p.s_and_b32(sPAR, sCB, 1)
        self.srd(rWQ, pWQ, 512 * 3072)
        self.srd(rW1, pW1, 512 * 3584)
        self.srd(rW3, pW3, 512 * 3584)
        self.srd(rWU, pW3 if hf else pW1, 512 * 3584)
        self.srd(rWS, pWS, WS_END)
        self.srd(rW2, pW2, 1792 * 1024)
        self.srd(rWO, pWO, 512 * 1024)
        self.srd(rOUT, pOUT, 2048 * 1024)
        p.s_and_b32(t0, sR3, 3)
        p.s_mul_i32(t0, t0, 7)
        p.s_lshr_b32(t1, sR3, 2)
        p.s_min_u32(t1, t1, 6)
        p.s_add_u32(sROT2, t0, t1)
        p.s_lshl_b32(sUPk, sROT, 1)
        p.s_lshl_b32(t0, sHEAD, 16)
        p.s_add_u32(sKV, t0, sW1024)
        a, b, d = v(16), v(17), v(18)
        self.vWr, self.vXe, self.vXo = v(13), v(14), v(15)
        p.v_and_b32(a, 3, L)
        p.v_lshrrev_b32(b, 2, L)
        p.s_and_b32(t0, sWL, 1)
        p.s_lshl_b32(t0, t0, 4)
        p.v_add_u32(b, t0, b)
        p.v_lshlrev_b32(d, 1, a)
        p.v_xor_b32(b, b, d)
        p.v_lshlrev_b32(b, 4, b)
        p.v_lshrrev_b32(d, 1, a)
        p.v_lshl_add_u32(b, d, 12, b)
        p.v_and_b32(d, 1, a)
        p.v_lshl_add_u32(b, d, 9, b)
        p.s_lshr_b32(t0, sWL, 1)
        p.s_lshl_b32(t0, t0, 10)
        p.v_add_u32(self.vWr, t0, b)
        mh, h, r, c = v(19), v(20), v(21), v(22)
        p.v_bfe_u32(mh, L, 4, 1)
        p.v_lshrrev_b32(h, 5, L)
        p.v_bfe_u32(r, L, 2, 2)
        p.v_and_b32(c, 3, L)
        p.v_and_b32(a, 31, L)
        p.v_lshlrev_b32(d, 1, h)
        p.v_xor_b32(a, a, d)
        p.v_lshlrev_b32(a, 4, a)
        p.v_lshl_add_u32(a, h, 9, a)
        p.s_and_b32(t0, sW, 3)
        p.s_lshl_b32(t0, t0, 10)
        p.v_add_u32(self.vXe, t0, a)
        p.v_xor_b32(self.vXo, 64, self.vXe)
        self.vWQ = [v(4), v(5)]
        p.v_lshl_add_u32(a, h, 3, r)
        p.v_mul_u32_u24(b, 192, a)
        p.v_lshl_add_u32(b, mh, 5, b)
        p.v_lshl_add_u32(b, c, 3, b)
        p.v_add_u32(self.vWQ[0], L_WQ, b)
        p.v_add_u32(self.vWQ[1], L_WQ + 49152, b)
        self.vUP = [v(6), v(7), v(8), v(9)]
        p.v_lshlrev_b32(a, 8, a)
        p.v_lshl_add_u32(a, mh, 12, a)
        p.v_lshl_add_u32(a, c, 3, a)
        p.v_lshl_add_u32(b, mh, 2, r)
        if hf:
            p.v_xor_b32(b, 4, b)
        p.v_lshl_add_u32(self.vUP[0], b, 5, a)
        for k in range(1, 4):
            p.v_xor_b32(self.vUP[k], 32 * k, self.vUP[0])
        self.vUD = v(12)
        p.v_lshrrev_b32(a, 4, L)
        p.v_lshlrev_b32(b, 1, a)
        if hf:
            p.v_xor_b32(b, 8, b)
        p.v_and_b32(d, 15, L)
        p.v_xor_b32(b, b, d)
        p.v_mul_u32_u24(a, 3584, a)
        p.v_lshl_add_u32(a, b, 4, a)
        p.s_and_b32(t0, sW, 3)
        p.s_mul_i32(t0, t0, 4 * 3584)
        p.s_lshl_b32(t1, sCB, 8)
        p.s_add_u32(t0, t0, t1)
        p.s_cmp_ge_u32(sCB, 14)
        p.s_cselect_b32(t1, 0x40000000, 0)
        p.s_add_u32(t0, t0, t1)
        p.v_add_u32(self.vUD, t0, a)
        self.vL16, self.vSt = v(10), v(11)
        p.v_lshlrev_b32(self.vL16, 4, L)
        if hf == 0:
            p.v_and_b32(a, 0x33, L)
            p.v_bfe_u32(b, L, 2, 1)
            p.v_lshl_add_u32(a, b, 3, a)
            p.v_bfe_u32(b, L, 3, 1)
            p.v_lshl_add_u32(a, b, 2, a)
            p.v_lshlrev_b32(a, 4, a)
            p.s_cmp_eq_u32(sPAR, 0)
            p.s_cselect_b64("vcc", -1, 0)
            p.v_cndmask_b32(self.vSt, a, self.vL16, "vcc")
            p.s_mov_b32(t2, 43691)
            p.s_lshl_b32(t0, sPAR, 10)
            p.s_lshl_b32(t1, sPAR, 6)
            p.s_add_u32(t1, t1, 2048 - 128)
            p.v_mov_b32(mh, t0)
            p.v_mov_b32(h, t1)
            self.pat = [v(24), v(25), v(26)]
            for q in range(3):
                p.v_add_u32(a, 64 * q, L)
                p.v_mul_u32_u24(b, t2, a)
                p.v_lshrrev_b32(b, 19, b)
                p.v_mul_u32_u24(d, 12, b)
                p.v_sub_u32(a, a, d)
                p.v_cmp_le_u32("vcc", 8, a)
                p.v_mul_u32_u24(b, 3072, b)
                p.v_lshl_add_u32(b, a, 4, b)
                p.v_cndmask_b32(d, mh, h, "vcc")
                p.v_add_u32(self.pat[q], d, b)
            p.s_lshr_b32(t1, sCB, 1)
            p.s_lshl_b32(sT[5], t1, 7)
            p.s_add_u32(sT[4], sUPk, sW)
            p.s_mul_i32(sT[7], sW, 3072)
        else:
            p.v_and_b32(a, 15, L)
            p.v_lshl_add_u32(a, h, 4, a)
            p.v_lshlrev_b32(a, 4, a)
            p.v_lshl_add_u32(self.vSt, mh, 16, a)
        p.wait_smem()
        p.s_mul_i32(sEP, sEP, 0x9E3779B1)
        p.s_add_u32(sEP, sEP, 0x7F4A7C15)

    def code_prefetch(self):
        p = self.p
        skip = self.lab("cp")
        rC = s(68, 4)
        p.s_cmp_lg_u32(sW, 4)
        p.s_cbranch_scc1(skip)
        st0 = p.fork()
        p.raw(f"    s_getpc_b64 {rC[0:2]}")
        p.label("L_pc")
        p.s_sub_u32(rC[0], rC[0], f"L_pc-{NAME}")
        p.s_subb_u32(rC[1], rC[1], 0)
        p.s_mov_b32(rC[2], f"L_code_end-{NAME}")
        p.s_mov_b32(rC[3], 0x00020000)
        p.s_lshr_b32(sT[1], sG, 3)
        p.s_mul_i32(sT[1], sT[1], 10)
        p.v_add_u32(v(29), sT[1], self.vL)
        p.v_lshlrev_b32(v(29), 7, v(29))
        p.s_mov_b64("exec", 0x3FF)
        p.buffer_load_dword(v(30), v(29), rC, 0, mods="offen")
        p.s_mov_b64("exec", -1)
        p.label(skip)
        p.join(st0)

    def layernorm(self, hf):
        p = self.p
        o = self.o
        X, L = self.X, self.vL
        p.wait_smem()
        p.s_sub_u32(rX[0], pX[0], 1024)
        p.s_subb_u32(rX[1], pX[1], 0)
        p.s_mov_b32(sWL, sT[5])
        p.s_mov_b32(sROT, sT[6])
        self.stamp("start")
        sa, sb, qa, qb, vOne = v(32), v(33), v(34), v(35), v(36)

        def stat(i):
            for j in range(2):
                a, b = X[4 * i + 2 * j], X[4 * i + 2 * j + 1]
                first = i == 0 and j == 0
                p.v_dot2_f32_bf16(sa, a, vOne, 0 if first else sa)
                p.v_dot2_f32_bf16(qa, a, a, 0 if first else qa)
                p.v_dot2_f32_bf16(sb, b, vOne, 0 if first else sb)
                p.v_dot2_f32_bf16(qb, b, b, 0 if first else qb)

        D = o.get("xdepth", 12)
        if hf == 1:
            if o.get("codepf", 1):
                self.code_prefetch()
            self.addr_setup(hf)
        early = o.get("wq_early", 0)
        if hf == 0 and early:
            def first():
                for i in range(D):
                    self.xload(i)

            def second():
                for i in range(4):
                    p.s_add_u32(sT[6], sT[4], 2 * i - 2)
                    p.s_and_b32(sT[6], sT[6], 31)
                    p.s_mul_i32(sT[6], sT[6], 49152)
                    p.s_add_u32(sT[6], sT[6], sT[5])
                    for q in range(3):
                        self.dma(self.pat[q], rWQ, sT[6], L_WQ + (2 * i - 2) * 3072 + q * 1024, "wq0", m0add=sT[7])
                first()
            self.when(("w01", True), "lt", 2, first)
            self.addr_setup(hf)
            self.when(("w01", False), "ge", 2, second)
            del p.expect["wq0"]
        else:
            for i in range(D):
                self.xload(i)
            if hf == 0:
                self.addr_setup(hf)
        p.v_mov_b32(vOne, sONES)
        self.stamp("pre_stat")
        for i in range(16):
            if i + D < 16:
                self.xload(i + D)
            stat(i)
        self.stamp("x_in")
        self.pf_at(f"xin{hf}")
        p.v_add_f32(sa, sa, sb)
        p.v_add_f32(qa, qa, qb)
        dp = "row_mask:0xf bank_mask:0xf"
        p.v_add_f32_dpp(sb, sa, sa, mods="quad_perm:[1,0,3,2] " + dp)
        p.v_add_f32_dpp(qb, qa, qa, mods="quad_perm:[1,0,3,2] " + dp)
        p.v_add_f32_dpp(sa, sb, sb, mods="quad_perm:[2,3,0,1] " + dp)
        p.v_add_f32_dpp(qa, qb, qb, mods="quad_perm:[2,3,0,1] " + dp)
        nm = sb
        p.v_mul_f32(nm, f32(-1.0 / 512), sa)
        p.v_mul_f32(qa, f32(1.0 / 512), qa)
        p.v_fma_f32(qa, Neg(nm), nm, qa)
        p.v_max_f32(qa, 0, qa)
        self.vVe, self.vRs = v(2), v(3)
        p.v_add_f32(self.vVe, f32(1e-5), qa)
        p.v_rsq_f32(self.vRs, self.vVe)
        tmp = [v(40 + i) for i in range(8)]

        def norm(i):
            g = X[4 * i:4 * i + 4]
            for j in range(4):
                p.v_dot2_f32_bf16(tmp[2 * j], g[j], sC10, nm)
                p.v_dot2_f32_bf16(tmp[2 * j + 1], g[j], sC01, nm)
            for j in range(4):
                p.v_cvt_pk_bf16_f32(g[j], tmp[2 * j], tmp[2 * j + 1])

        self.q = []
        n1 = o.get("wq_n1", 4)
        for i in range(8):
            norm(i)
            self.xwrite(i)
        self.stamp("ln_h0")
        if hf == 0:
            for i in range(8, 16):
                norm(i)
            for kk in range(2 if early else 0, n1):
                self.wq_dma(kk)
            self.drip(100)
            self.pf_at("h1")
        self.barrier()
        self.stamp("ln_b1")
        for i in range(8, 16):
            self.xread(2 * (i - 8))
            self.xread(2 * (i - 8) + 1)
            if hf == 1:
                norm(i)
        if hf == 0:
            for kk in range(n1, 8):
                self.wq_dma(kk)
            self.drip(100)

    def xwrite(self, i):
        self.p.ds_write_b128(self.vWr, self.X[4 * i:4 * i + 4], mods=f"offset:{L_XST + (i % 8) * 8192}")

    def xread(self, ks):
        a = self.vXo if ks & 1 else self.vXe
        self.p.ds_read_b128(self.XF[4 * ks:4 * ks + 4], a, mods=f"offset:{L_XST + (ks % 16) * 4096}")

    def up_src(self, ks):
        p = self.p
        t0 = sT[0]
        p.s_add_u32(t0, sUPk, ks)
        p.s_and_b32(t0, t0, 31)
        p.s_mul_i32(t0, t0, 16 * 3584)

    def up_dma(self, ks):
        def one():
            if self.o.get("x_nodma"):
                self.p.optional.add(f"up{ks}")
                return
            self.up_src(ks)
            if self.o.get("x_oob"):
                self.p.s_mov_b32(sT[0], 0x7000000)
            if self.o.get("x_same"):
                self.p.s_mov_b32(sT[0], 0)
            self.dma(self.vUD, rWU, sT[0], UP_SLOT[ks], f"up{ks}", m0add=sW1024)
        self.q.append(one)

    def up_dma2(self, ks):
        def one():
            self.up_src(ks)
            self.dma(self.vUD, rW3, sT[0], UP_SLOT[ks], f"up{ks}", m0add=sW1024)
            self.dma(self.vUD2, rW1, sT[0], UP_SLOT[ks] - 4096, f"up{ks}", m0add=sW1024)
        self.q.append(one)

    def kv_dma(self, c):
        p = self.p
        t0 = sT[0]

        def src(base):
            p.s_add_u32(t0, sQB, c)
            p.s_and_b32(t0, t0, 7)
            p.s_lshl_b32(t0, t0, 13)
            p.s_add_u32(t0, t0, sKV)
            p.s_add_u32(t0, t0, base)

        def k():
            src(WS_K)
            self.dma(self.vL16, rWS, t0, CH_BASE[c], f"kv{c}", m0add=sW1024, sc1=True)

        def vv():
            src(WS_V)
            self.dma(self.vL16, rWS, t0, CH_BASE[c] + 8192, f"kv{c}", m0add=sW1040, sc1=True)
        self.q += [k, vv]

    def kv_ones(self, c0, n):
        p = self.p
        p.s_add_u32(sT[0], sW1040, CH_BASE[c0] + 8192 + 1024)
        p.v_lshrrev_b32(v(31), 1, self.vL)
        p.v_mul_u32_u24(v(31), CH, v(31))
        p.v_and_b32(v(29), 1, self.vL)
        p.v_lshl_add_u32(v(31), v(29), 4, v(31))
        p.v_add_u32(v(31), sT[0], v(31))
        p.s_mov_b64("exec", (1 << (2 * n)) - 1)
        p.ds_write_b128(v(31), self.vOnes4)
        p.s_mov_b64("exec", -1)

    def q_load(self):
        p = self.p
        t0 = sT[0]
        p.s_lshl_b32(t0, sQB, 13)
        p.s_add_u32(t0, t0, sKV)
        p.s_add_u32(t0, t0, WS_Q)
        p.buffer_load_dwordx4(self.vQ, self.vL16, rWS, t0, mods="offen sc1")

    def qkv(self, hf):
        p = self.p
        L = self.vL
        XF = self.XF
        ring = [v(32 + 4 * i, 4) for i in range(8)]
        acc = [v(64 + 16 * i, 16) for i in range(4)]
        t0, t1 = sT[0], sT[1]
        MF = "v_mfma_f32_32x32x16_bf16"
        self.q = []
        o = self.o

        def w(*tags):
            return lambda: p.wait(vm=list(tags))

        tiles = [0, 1] if hf == 0 else [2]
        nt = len(tiles)
        depth = o.get("qkv_depth", (5, 4))[hf]

        def rd(i):
            ks, T = i // nt, tiles[i % nt]
            for e in range(2):
                off = (ks % 16) * 3072 + e * 768 + T * 64
                p.ds_read_b64_tr_b16(ring[i % 8][2 * e:2 * e + 2], self.vWQ[ks // 16], mods=f"offset:{off}")

        def mm(i):
            ks, k = i // nt, i % nt
            x, w_ = XF[4 * ks:4 * ks + 4], ring[i % 8]
            a, b = (w_, x) if hf == 0 else (x, w_)
            p.I(MF, acc[k], a, b, 0 if ks == 0 else acc[k])

        B3, B4 = 8, 16

        def ex(i):
            ks, k = i // nt, i % nt
            if hf == 0 and i < 8:
                self.xwrite(8 + i)
            if k == 0 and B3 - 1 <= ks < B3 + 3:
                for z in range(4):
                    self.xread(16 + 4 * (ks - B3 + 1) + z)
            if hf == 1 and ks % 2 == 0:
                self.drip()

        def post3():
            self.stamp("qb3")
            if hf == 1:
                for ks in range(3):
                    self.up_dma2(ks)

        def post4():
            self.stamp("qb4")
            p.v_lshrrev_b32(v(16), 2, L)
            p.s_lshl_b32(t0, sWL, 4)
            p.s_add_u32(t0, t0, L_RS // 4)
            p.v_add_lshl_u32(v(16), t0, v(16), 2)
            p.ds_write_b32(v(16), self.vRs)
            p.ds_write_b32(v(16), self.vVe, mods="offset:512")
            if hf == 1:
                for ks in range(3, 11):
                    self.up_dma2(ks)

        if hf == 1:
            self.vUD2 = v(1)
            p.v_xor_b32(self.vUD2, 128, self.vUD)
        p.wait(vm="wq0")
        self.barrier()
        self.stamp("ln_done")
        if hf == 1:
            for i in range(8, 16):
                self.xwrite(i)
            self.pf_at("b2")
        lead = o.get("lead", 2)
        self.gemm_stream(32 * nt, rd, mm, depth,
                         {B3 * nt: (lead, w("wq1"), post3), B4 * nt: (lead, w("wq2", "wq3"), post4)}, ex)
        self.stamp("qkv_pre")
        self.drip(100)
        p.wait(vm=["up0", "up1", "up2", "up3"])
        self.barrier()
        self.stamp("qkv_mm")
        rs, ve = self.vRs, self.vVe
        p.v_and_b32(v(16), 31, L)
        p.s_and_b32(t1, sW, 3)
        p.s_lshl_b32(t0, t1, 7)
        p.s_add_u32(t0, t0, L_RS)
        p.v_lshl_add_u32(v(16), v(16), 2, t0)
        p.ds_read_b32(rs, v(16))
        p.ds_read_b32(ve, v(16), mods="offset:512")
        if hf == 1:
            RV = acc[1]
            p.v_lshrrev_b32(v(17), 5, L)
            p.v_lshl_add_u32(v(17), v(17), 4, t0)
            for j in range(4):
                p.ds_read_b128(RV[4 * j:4 * j + 4], v(17), mods=f"offset:{32 * j}")
        p.s_lshl_b32(t0, sRB, 2)
        p.s_add_u32(sT[3], t0, t1)
        p.s_lshl_b32(t0, sT[3], 10)
        p.s_lshr_b32(t1, sCB, 1)
        p.s_lshl_b32(t1, t1, 18)
        p.s_add_u32(sT[2], t0, t1)
        if hf == 0:
            p.s_cmp_eq_u32(sPAR, 0)
            p.s_cselect_b32(t1, f32(QSCALE), 1.0)
            p.s_cselect_b32(t0, 0, WS_K - WS_Q)
            p.s_add_u32(sT[2], sT[2], t0)
            p.s_add_u32(sT[2], sT[2], WS_Q)
            p.v_mul_f32(v(16), t1, rs)
            for T in range(2):
                for i in range(16):
                    p.v_mul_f32(acc[T][i], v(16), acc[T][i])
                for i in range(8):
                    p.v_cvt_pk_bf16_f32(acc[T][i], acc[T][2 * i], acc[T][2 * i + 1])
                for hd in range(2):
                    p.s_add_u32(t0, sT[2], (2 * T + hd) * 65536)
                    p.buffer_store_dwordx4(acc[T][4 * hd:4 * hd + 4], self.vSt, rWS, t0, mods="offen sc1", tag="qkv")
        else:
            for i in range(16):
                p.v_mul_f32(acc[0][i], RV[i], acc[0][i])
            for i in range(8):
                p.v_cvt_pk_bf16_f32(acc[0][i], acc[0][2 * i], acc[0][2 * i + 1])
            p.s_lshl_b32(t0, sPAR, 17)
            p.s_add_u32(t0, t0, sT[2])
            p.s_add_u32(t0, t0, WS_V)
            for sx in range(2):
                p.buffer_store_dwordx4(acc[0][4 * sx:4 * sx + 4], self.vSt, rWS, t0,
                                       mods=f"offen offset:{512 * sx} sc1", tag="qkv")
        p.v_mul_f32(rs, f32(-LOG2E), rs)
        self.stamp("qkv_st")

    def publish_qkv(self):
        p = self.p
        t0, t1 = sT[0], sT[1]
        skip = self.lab("nf")
        p.s_cmp_lg_u32(sW, 0)
        p.s_cbranch_scc1(skip)
        st0 = p.fork()
        p.s_lshr_b32(t0, sCB, 1)
        p.s_lshl_b32(t0, t0, 8)
        p.s_lshl_b32(t1, sRB, 3)
        p.s_add_u32(t0, t0, t1)
        p.s_lshl_b32(t1, sPAR, 2)
        p.s_add_u32(t0, t0, t1)
        p.s_add_u32(t0, t0, WS_FQ)
        self.flag_store(v(29), v(30), t0)
        p.label(skip)
        p.join(st0)

    def fq_poll_issue(self, vP, vF32):
        p = self.p
        p.s_lshr_b32(sT[4], sHEAD, 2)
        p.s_lshl_b32(sT[4], sT[4], 8)
        p.s_add_u32(sT[4], sT[4], WS_FQ)
        self.poll_issue(vP, vF32, sT[4])

    def flush_half(self, lo):
        q = list(self.q)
        if q:
            self.only(lo, lambda: [f() for f in q])

    def up(self):
        p = self.p
        L = self.vL
        XF = self.XF
        o = self.o
        ring = [v(32 + 4 * i, 4) for i in range(8)]
        acc = [v(64 + 16 * i, 16) for i in range(4)]
        t0, t1 = sT[0], sT[1]
        MF = "v_mfma_f32_32x32x16_bf16"
        rs, ve = self.vRs, self.vVe
        vP, vF32 = v(28), v(23)
        self.vQ = v(128, 4)
        self.vOnes4 = v(24, 4)
        p.v_and_b32(v(29), 1, L)
        p.v_add_u32(v(29), -1, v(29))
        for i in range(4):
            p.v_and_b32(self.vOnes4[i], sONES, v(29))
        self.vFl = v(13)
        p.v_and_b32(self.vFl, 15, L)
        p.v_lshlrev_b32(self.vFl, 2, self.vFl)
        p.v_and_b32(vF32, 31, L)
        p.v_lshlrev_b32(vF32, 2, vF32)
        self.q = []
        p.s_cmp_ge_u32(sCB, 14)
        p.s_cbranch_scc1("L_noup")
        st_idle = p.split("ffn", True)

        win = [0] * 4

        def rd(i):
            ks, k = i >> 2, i & 3
            a = UP_SLOT[ks]
            if not (win[k] <= a and a + 1024 < win[k] + 65536):
                p.v_add_u32(self.vUP[k], (a - win[k]) & 0xFFFFFFFF, self.vUP[k])
                win[k] = a
            for e in range(2):
                if o.get("x_nord") and i >= 8:
                    continue
                p.ds_read_b64_tr_b16(ring[i % 8][2 * e:2 * e + 2], self.vUP[k], mods=f"offset:{a - win[k] + e * 1024}")

        def mm(i):
            ks, k = i >> 2, i & 3
            p.I(MF, acc[k], ring[i % 8], XF[4 * ks:4 * ks + 4], 0 if ks == 0 else acc[k])

        stag = o.get("stagger", 1)
        PUB, SEE = o.get("pub", 12), 20
        BARS = [4, 8, 12, 16, 20, 24]
        sched = {0: range(11, 15), 4: range(15, 19), 8: range(19, 23), 12: range(23, 27), 16: range(27, 31), 20: [31]}

        def start_interval(b):
            for ks in sched.get(b, []):
                self.up_dma(ks)
            if b == SEE:
                self.stamp("q_seen")
                for c in range(3):
                    self.kv_dma(c)
                self.q.insert(3, self.q_load)
                self.kv_ones(0, 3)
            if b == 24:
                self.kv_dma(3)
                self.kv_ones(3, 1)
            if stag and b < SEE:
                self.flush_half(False)

        def mkpre(b):
            def pre():
                if stag and b <= SEE:
                    self.flush_half(True)
                    self.q = []
                self.drip(100)
                nxt = min([x for x in BARS if x > b] + [32])
                self.stamp(f"pre{b}")
                if b == SEE:
                    self.stamp("b3")
                    self.when(("w1", True), "eq", 1, lambda: self.poll_check(vP, vF32, sT[4]))
                p.wait(vm=[f"up{k}" for k in range(b, nxt)] + (["qkv"] if b == PUB else []))
                self.stamp(f"wt{b}")
            return pre

        def mkpost(b):
            def post():
                if b == PUB:
                    self.publish_qkv()
                    self.stamp("q_flag")
                start_interval(b)
            return post

        def ex(i):
            ks, k = i >> 2, i & 3
            if i == 4 * SEE - o.get("polld", 10):
                self.when(("w1", True), "eq", 1, lambda: self.fq_poll_issue(vP, vF32))
            if (not stag or ks >= SEE) and (k == 0 or (k == 2 and len(self.q) > 3)):
                self.drip()

        start_interval(0)
        lead = o.get("lead", 2)
        bars = {4 * b: (lead, mkpre(b), mkpost(b)) for b in BARS}
        self.gemm_stream(128, rd, mm, o.get("up_depth", 6), bars, ex)
        self.drip(100)
        self.stamp("up_mm")
        if -1 in o.get("prio", PRIO_DEFAULT):
            p.s_setprio(o.get("prio", PRIO_DEFAULT)[-1])

        def last_barrier():
            p.wait(vm=["kv0", "kv1", "kv2", "kv3"])
            self.barrier()

        self.only(False, last_barrier)
        p.s_mul_i32(t0, sT[3], 112)
        p.s_lshl_b32(t1, sCB, 3)
        p.s_add_u32(t0, t0, t1)
        p.s_and_b32(t1, sW, 4)
        p.s_add_u32(t0, t0, t1)
        p.s_lshl_b32(t0, t0, 10)
        p.s_add_u32(sT[2], t0, WS_H)
        tmp = [v(32 + i) for i in range(8)]
        for k in range(4):
            g, u = acc[k][0:8], acc[k][8:16]
            for i in range(8):
                p.v_mul_f32(tmp[i], rs, g[i])
            for i in range(8):
                p.v_exp_f32(tmp[i], tmp[i])
            for i in range(8):
                p.v_mul_f32(u[i], g[i], u[i])
            for i in range(8):
                p.v_fma_f32(tmp[i], tmp[i], ve, ve)
            for i in range(8):
                p.v_rcp_f32(tmp[i], tmp[i])
            for i in range(8):
                p.v_mul_f32(u[i], u[i], tmp[i])
            for i in range(4):
                p.v_cvt_pk_bf16_f32(g[i], u[2 * i], u[2 * i + 1])
            p.buffer_store_dwordx4(g[0:4], self.vL16, rWS, sT[2], mods=f"offen offset:{1024 * k} sc1", tag="h")
        self.only(True, last_barrier)
        p.s_branch("L_updone")
        st_main = p.fork()

        p.restore(st_idle)
        p.label("L_noup")
        p.wait(vm="*")
        self.barrier()
        self.publish_qkv()

        def idle_poll():
            self.fq_poll_issue(vP, vF32)
            self.poll_check(vP, vF32, sT[4])
        self.when(("w1", True), "eq", 1, idle_poll)
        self.barrier()
        self.q_load()
        for c in range(4):
            self.kv_dma(c)
        self.drip(100)
        self.kv_ones(0, 3)
        self.kv_ones(3, 1)
        last_barrier()
        p.label("L_updone")
        p.join(st_main)
        self.kv_ones(4, 4)
        self.w2_setup()
        for c in range(4, 8):
            self.kv_dma(c)
        for st in range(3):
            self.w2_dma(st)
        self.stamp("up_done")

    def w2_setup(self):
        p = self.p
        L = self.vL
        t0, t1 = sT[0], sT[1]
        self.vW2D = v(12)
        a, b = v(20), v(21)
        p.v_lshrrev_b32(a, 3, L)
        p.v_bfe_u32(b, L, 4, 1)
        p.v_lshlrev_b32(b, 2, b)
        p.v_and_b32(v(22), 7, L)
        p.v_xor_b32(b, b, v(22))
        p.v_lshlrev_b32(b, 4, b)
        p.v_lshl_add_u32(a, a, 10, b)
        p.s_lshr_b32(t0, sW, 1)
        p.s_mul_i32(t0, t0, 28 * 16 * 1024)
        p.s_and_b32(t1, sW, 1)
        p.s_lshl_b32(t1, t1, 13)
        p.s_add_u32(t0, t0, t1)
        p.s_lshl_b32(t1, sC3, 7)
        p.s_add_u32(t0, t0, t1)
        p.v_add_u32(self.vW2D, t0, a)

    def rot28(self, dst, st, shift):
        p = self.p
        p.s_add_u32(dst, sROT2, st)
        p.s_cmp_ge_u32(dst, 28)
        p.s_cselect_b32(sT[1], 28, 0)
        p.s_sub_u32(dst, dst, sT[1])
        p.s_lshl_b32(dst, dst, shift)

    def w2_dma(self, st):
        p = self.p

        def one():
            self.rot28(sT[0], st, 14)
            self.dma(self.vW2D, rW2, sT[0], W2_SLOT[st], f"w2_{st}", m0add=sW1024)
        self.q.append(one)

    def attention(self):
        p = self.p
        L = self.vL
        t0, t1 = sT[0], sT[1]
        S = [v(16, 16), v(32, 16)]
        O, NM = v(48, 16), v(64, 16)
        Q = self.vQ
        K, V0, V1 = [v(80, 4), v(84, 4)], [v(88, 4), v(92, 4)], [v(96, 4), v(100, 4)]
        vIdx = v(14)
        vK, vV0, vV1 = v(4), v(5), v(6)
        self.H = v(144, 112)
        self.att = dict(S=S, O=O, NM=NM, Q=Q, K=K[0], V0=V0[0], V1=V1[0], vIdx=vIdx)
        MF, SM = "v_mfma_f32_32x32x16_bf16", "v_smfmac_f32_32x32x32_bf16"

        p.v_and_b32(v(7), 15, L)
        p.v_lshrrev_b32(v(8), 5, L)
        p.v_lshl_add_u32(v(8), v(8), 4, v(7))
        p.v_lshlrev_b32(v(8), 4, v(8))
        p.v_min_u32(v(7), 1, v(7))
        p.v_lshlrev_b32(v(7), 4, v(7))
        p.v_add_u32(v(7), 1024, v(7))
        p.v_and_b32(v(15), 16, L)
        p.v_cmp_eq_u32("vcc", 16, v(15))
        p.v_add_u32(v(15), 512, v(8))
        p.v_mov_b32(vK, self.vL16)
        p.v_cndmask_b32(vV0, v(8), v(7), "vcc")
        p.v_cndmask_b32(vV1, v(15), v(7), "vcc")
        p.v_mov_b32(vIdx, 0xDDDD)
        win = {id(vK): 0, id(vV0): 0, id(vV1): 0}

        def rd(dst, areg, addr, tag):
            w = win[id(areg)]
            if not (w <= addr < w + 65536):
                nw = addr & ~0xFF
                p.v_add_u32(areg, (nw - w) & 0xFFFFFFFF, areg)
                win[id(areg)] = w = nw
            p.ds_read_b128(dst, areg, mods=f"offset:{addr - w}", tag=tag)

        def rdK(b, tag=None):
            if b < 64:
                rd(K[b & 1], vK, CH_BASE[b >> 3] + (b & 7) * 1024, tag)

        def rdV(b, sx, tag=None):
            if b < 64:
                rd((V1 if sx else V0)[b & 1], vV1 if sx else vV0, CH_BASE[b >> 3] + 8192 + (b & 7) * VB, tag)

        rdK(0)
        rdK(1)
        rdV(0, 0)
        rdV(0, 1)
        rdV(1, 0)
        p.I(MF, S[0], K[0], Q, 0)
        p.I(MF, S[1], K[1], Q, 0)
        for i in range(16):
            p.v_mov_b32(O[i], 0)
        m = v(7)
        p.v_max3_f32(m, S[0][0], S[0][1], S[0][2])
        for i in range(3, 15, 2):
            p.v_max3_f32(m, S[0][i], S[0][i + 1], m)
        p.v_max3_f32(m, S[0][15], S[1][0], m)
        for i in range(1, 15, 2):
            p.v_max3_f32(m, S[1][i], S[1][i + 1], m)
        p.v_max_f32(m, S[1][15], m)
        p.v_mov_b32(v(8), m)
        p.v_permlane32_swap_b32(m, v(8))
        p.v_max_f32(m, m, v(8))
        p.v_sub_f32(NM[0], f32(-M_OFF), m)
        for i in range(1, 16):
            p.v_mov_b32(NM[i], NM[0])
        p.I(MF, S[0], K[0], Q, NM)
        rdK(2)
        p.s_mov_b32(sSLOW, 0)
        self.stamp("att_start")

        vP = v(15)
        hq = []

        def h_loads():
            def first():
                p.s_lshl_b32(t0, sR3, 1)
                p.s_and_b32(t1, sW, 1)
                p.s_add_u32(t0, t0, t1)
                p.s_mul_i32(t0, t0, 112)
                p.s_lshr_b32(t1, sW, 1)
                p.s_mul_i32(t1, t1, 28)
                p.s_add_u32(t0, t0, t1)
                p.s_add_u32(t0, t0, sROT2)
                p.s_lshl_b32(t0, t0, 10)
                p.s_add_u32(sA, t0, WS_H)
                p.s_sub_u32(sB, sA, 28 * 1024)
            for st in range(28):
                def one(st=st):
                    if st == 0:
                        first()
                    elif st % 4 == 0:
                        p.s_add_u32(sA, sA, 4096)
                        p.s_add_u32(sB, sB, 4096)
                    p.s_cmp_ge_u32(sROT2, 28 - st)
                    p.s_cselect_b32(t0, sB, sA)
                    p.buffer_load_dwordx4(self.H[4 * st:4 * st + 4], self.vL16, rWS, t0,
                                          mods=f"offen offset:{(st % 4) * 1024} sc1")
                hq.append(one)

        h_loads()
        prio = self.o.get("prio", PRIO_DEFAULT)
        MID = 30
        HP = self.o.get("hpoll", 40)
        for b in range(64):
            cur, oth = S[b & 1], S[(b + 1) & 1]
            if b in prio:
                p.s_setprio(prio[b])

            def e(i, j):
                for x in range(i, j):
                    p.v_exp_f32(cur[x], cur[x])
            e(0, 2)
            if b >= 2 and b - 2 < 62:
                p.wait(lg=f"blk{b - 2}")
            if b > 0:
                p.I(SM, O, V1[(b - 1) & 1], oth[8:16], vIdx)
            rdV(b + 1, 1)
            e(2, 5)
            if b < 63:
                p.I(MF, oth, K[(b + 1) & 1], Q, NM)
            if b not in (MID - 1, MID):
                rdK(b + 3)
            if b == 20 and self.o.get("wopf", 1):
                p.s_and_b32(t0, sR3, 3)
                p.s_lshl_b32(t0, t0, 3)
                p.s_add_u32(t0, t0, sW)
                p.s_lshl_b32(t0, t0, 14)
                p.s_lshl_b32(t1, sC3, 7)
                p.s_add_u32(t0, t0, t1)
                p.v_lshlrev_b32(v(7), 10, L)
                p.s_mov_b64("exec", 0xFFFF)
                p.buffer_load_dword(v(104), v(7), rWO, t0, mods="offen")
                p.s_mov_b64("exec", -1)
            if b == HP:
                p.s_lshr_b32(sT[4], sR3, 1)
                p.s_lshl_b32(sT[4], sT[4], 8)
                p.s_add_u32(sT[4], sT[4], WS_FH)
                self.poll_issue(vP, self.vFl, sT[4])
            if b == HP + 4:
                self.poll_check(vP, self.vFl, sT[4])
            if b >= HP + 4 and hq:
                hq.pop(0)()
            e(5, 10)
            p.I(SM, O, V0[b & 1], cur[0:8], vIdx)
            if b == MID:
                p.wait(vm=["kv4", "kv5", "kv6", "kv7", "h"])
                self.barrier()
                rdK(b + 2)
                rdK(b + 3)

                def pub():
                    p.s_lshl_b32(t0, sRB, 8)
                    p.s_lshl_b32(t1, sCB, 2)
                    p.s_add_u32(t0, t0, t1)
                    p.s_add_u32(t0, t0, WS_FH)
                    self.flag_store(v(7), v(8), t0)
                self.when(("w0", True), "eq", 0, pub)
                self.stamp("att_mid")
            rdV(b + 2, 0, f"blk{b}")
            if MID < b <= MID + 8:
                self.w2_dma(3 + b - MID - 1)
            self.drip()
            if b >= HP + 4 and hq:
                hq.pop(0)()
            e(10, 16)
        p.I(SM, O, V1[1], S[1][8:16], vIdx)
        assert not hq
        p.s_setprio(0)
        self.stamp("att_loop")

        p.label("L_att_fin")
        p.nop(12)
        l, a, r = v(7), v(8), v(15)
        p.v_mov_b32(l, O[8])
        p.v_mov_b32(r, O[8])
        p.v_add_f32(a, Abs(O[0]), Abs(O[1]))
        p.v_permlane32_swap_b32(l, r)
        for i in range(2, 8):
            p.v_add_f32(a, Abs(O[i]), a)
        p.v_rcp_f32(r, l)
        p.s_mov_b32(t0, f32(2.0 ** 120))
        p.s_mov_b32(t1, 0x7F800000)
        p.v_cmp_nlt_f32(sV2, l, t0)
        p.v_cmp_nlt_f32("vcc", a, t1)
        for i in range(8):
            p.v_mul_f32(O[i], O[i], r)
        p.s_or_b64("vcc", "vcc", sV2)
        p.s_cmp_eq_u32(sSLOW, 0)
        p.s_cselect_b64(sV2, "vcc", 0)
        p.s_cmp_lg_u64(sV2, 0)
        p.s_cbranch_scc1("L_slow")
        for i in range(4):
            p.v_cvt_pk_bf16_f32(O[i], O[2 * i], O[2 * i + 1])
        p.s_lshl_b32(t0, sQB, 3)
        p.s_add_u32(sT[3], t0, sW)
        p.s_lshl_b32(t0, sT[3], 5)
        p.s_add_u32(sT[3], t0, sHEAD)
        p.s_lshl_b32(t0, sT[3], 10)
        p.s_add_u32(t0, t0, WS_O)
        p.buffer_store_dwordx4(O[0:4], self.vL16, rWS, t0, mods="offen sc1", tag="o")
        p.s_lshl_b32(sT[3], sT[3], 2)
        p.s_add_u32(sT[3], sT[3], WS_FO)

    def slow_path(self):
        p = self.p
        A = self.att
        S, O, NM, Q, K, V0, V1, vIdx = A["S"][0], A["O"], A["NM"], A["Q"], A["K"], A["V0"], A["V1"], A["vIdx"]
        t0, t1, t2, cnt = sT[0], sT[1], sT[2], sT[3]
        MF, SM = "v_mfma_f32_32x32x16_bf16", "v_smfmac_f32_32x32x32_bf16"
        p.label("L_slow")
        p.wait_all()
        p.nop(16)
        m = v(7)
        p.v_mov_b32(m, 0xFF800000)
        p.s_lshl_b32(t2, sHEAD, 16)
        p.s_add_u32(t0, t2, WS_K)
        p.s_mov_b32(cnt, 64)
        p.label("L_slow1")
        p.buffer_load_dwordx4(K, self.vL16, rWS, t0, mods="offen sc1")
        p.I(MF, S, K, Q, 0)
        for i in range(0, 16, 2):
            p.v_max3_f32(m, S[i], S[i + 1], m)
        p.s_add_u32(t0, t0, 1024)
        p.s_sub_u32(cnt, cnt, 1)
        p.s_cmp_lg_u32(cnt, 0)
        p.s_cbranch_scc1("L_slow1")
        p.v_mov_b32(v(8), m)
        p.v_permlane32_swap_b32(m, v(8))
        p.v_max_f32(m, m, v(8))
        for i in range(16):
            p.v_sub_f32(NM[i], 0, m)
            p.v_mov_b32(O[i], 0)
        for i in range(4):
            p.v_mov_b32(V0[i], sONES)
            p.v_mov_b32(V1[i], sONES)
        va = v(8)
        p.v_and_b32(v(7), 15, self.vL)
        p.v_lshrrev_b32(va, 5, self.vL)
        p.v_lshl_add_u32(va, va, 4, v(7))
        p.v_lshlrev_b32(va, 4, va)
        p.s_add_u32(t0, t2, WS_K)
        p.s_add_u32(t1, t2, WS_V)
        p.s_mov_b32(cnt, 64)
        p.s_mov_b32(sV2[0], 0xFFFF)
        p.s_mov_b32(sV2[1], 0xFFFF)
        p.label("L_slow2")
        p.nop(16)
        p.buffer_load_dwordx4(K, self.vL16, rWS, t0, mods="offen sc1")
        p.s_mov_b64("exec", sV2)
        p.buffer_load_dwordx4(V0, va, rWS, t1, mods="offen sc1")
        p.buffer_load_dwordx4(V1, va, rWS, t1, mods="offen offset:512 sc1")
        p.s_mov_b64("exec", -1)
        p.wait_all()
        p.I(MF, S, K, Q, NM)
        for i in range(16):
            p.v_exp_f32(S[i], S[i])
        p.I(SM, O, V0, S[0:8], vIdx)
        p.I(SM, O, V1, S[8:16], vIdx)
        p.s_add_u32(t0, t0, 1024)
        p.s_add_u32(t1, t1, 1024)
        p.s_sub_u32(cnt, cnt, 1)
        p.s_cmp_lg_u32(cnt, 0)
        p.s_cbranch_scc1("L_slow2")
        p.s_mov_b32(sSLOW, 1)
        p.s_branch("L_att_fin")
        p.label("L_code_end")

    def tail(self):
        p = self.p
        L = self.vL
        t0, t1 = sT[0], sT[1]
        H = self.H
        MF, MF16 = "v_mfma_f32_32x32x16_bf16", "v_mfma_f32_16x16x32_bf16"
        p.wait(vm=[f"w2_{i}" for i in range(11)])
        self.barrier()
        self.stamp("t2")
        for st in range(11, 19):
            self.w2_dma(st)
        self.drip(2)
        mh, h, r, c = v(80), v(81), v(82), v(83)
        p.v_bfe_u32(mh, L, 4, 1)
        p.v_lshrrev_b32(h, 5, L)
        p.v_bfe_u32(r, L, 2, 2)
        p.v_and_b32(c, 3, L)
        vA = [[v(84), v(85), v(86)], [v(87), v(88), v(89)]]
        a = v(90)
        p.v_lshl_add_u32(a, h, 2, r)
        p.v_lshlrev_b32(a, 7, a)
        p.v_lshl_add_u32(a, mh, 5, a)
        p.v_lshl_add_u32(a, c, 3, a)
        p.v_lshrrev_b32(v(91), 1, r)
        p.v_lshl_add_u32(a, v(91), 6, a)
        p.s_lshr_b32(t0, sW, 1)
        p.s_lshl_b32(t0, t0, 11)
        p.v_add_u32(vA[0][0], t0, a)
        p.v_xor_b32(vA[1][0], 64, vA[0][0])
        for ct in range(2):
            p.v_add_u32(vA[ct][1], 65536, vA[ct][0])
            p.v_add_u32(vA[ct][2], 131072, vA[ct][0])
        acc = [v(16, 16), v(32, 16)]
        ring = [v(48 + 4 * i, 4) for i in range(8)]
        vWoD = v(92)
        p.v_lshrrev_b32(a, 3, L)
        p.v_bfe_u32(v(91), L, 4, 2)
        p.v_lshlrev_b32(v(91), 1, v(91))
        p.v_and_b32(v(93), 7, L)
        p.v_xor_b32(v(91), v(91), v(93))
        p.v_lshlrev_b32(v(91), 4, v(91))
        p.v_lshl_add_u32(a, a, 10, v(91))
        p.s_lshl_b32(t0, sW, 13)
        p.s_lshl_b32(t1, sC3, 7)
        p.s_add_u32(t0, t0, t1)
        p.v_add_u32(vWoD, t0, a)
        vP = v(94)
        XR = v(96, 4)
        vOut = v(95)

        def rd(i):
            st, ct = i >> 1, i & 1
            for e in range(2):
                ad = W2_SLOT[st] + e * 1024
                p.ds_read_b64_tr_b16(ring[i % 8][2 * e:2 * e + 2], vA[ct][ad >> 16], mods=f"offset:{ad & 0xFFFF}")

        def mm(i):
            st, ct = i >> 1, i & 1
            p.I(MF, acc[ct], ring[i % 8], H[4 * st:4 * st + 4], 0 if st == 0 else acc[ct])

        def post1():
            for st in range(19, 28):
                self.w2_dma(st)
            self.stamp("c1")

        def post2():
            for i in range(8):
                def one(i=i):
                    p.s_mov_b32(t0, i * 65536)
                    self.dma(vWoD, rWO, t0, L_WO + i * 8192, "wo", m0add=sW1024)
                self.q.append(one)
            self.stamp("c2")

        def ex(i):
            if i % 2 == 0:
                self.drip()
            if i == self.o.get("oflag_at", 14):
                p.wait(vm="o")
                self.flag_store(v(100), v(101), sT[3])
            if i == 24:
                p.v_and_b32(v(100), 15, L)
                p.v_lshrrev_b32(v(101), 4, L)
                p.v_lshlrev_b32(v(100), 10, v(100))
                p.v_lshl_add_u32(vOut, v(101), 3, v(100))
                p.s_lshl_b32(t0, sR3, 2)
                p.s_and_b32(t1, sW, 3)
                p.s_add_u32(t0, t0, t1)
                p.s_lshl_b32(t0, t0, 14)
                p.s_lshl_b32(t1, sC3, 7)
                p.s_add_u32(t0, t0, t1)
                p.s_lshr_b32(t1, sW, 2)
                p.s_lshl_b32(t1, t1, 6)
                p.s_add_u32(sT[6], t0, t1)
                for b in range(2):
                    p.buffer_load_dwordx2(XR[2 * b:2 * b + 2], vOut, rX, sT[6], mods=f"offen offset:{1024 + 32 * b}")
            if i == 48:
                p.s_lshl_b32(t0, sR3, 1)
                p.s_bfe_u32(t1, sW, 0x10001)
                p.s_add_u32(t0, t0, t1)
                p.s_lshl_b32(t0, t0, 5)
                p.s_lshr_b32(t1, sW, 2)
                p.s_lshl_b32(t1, t1, 4)
                p.s_add_u32(sT[7], t0, t1)
                p.s_lshl_b32(sT[4], sT[7], 2)
                p.s_add_u32(sT[4], sT[4], WS_FO)
                self.poll_issue(vP, self.vFl, sT[4])

        def w(lo, hi):
            def pre():
                self.drip(20)
                p.wait(vm=[f"w2_{i}" for i in range(lo, hi)])
            return pre

        bars = {22: (2, w(11, 19), post1), 38: (2, w(19, 28), post2)}
        self.gemm_stream(56, rd, mm, 6, bars, ex)
        self.drip(20)
        self.stamp("down_mm")
        self.poll_check(vP, self.vFl, sT[4])
        self.stamp("o_seen")
        OF = v(48, 32)
        vO = v(90)
        g4 = v(91)
        p.v_lshrrev_b32(g4, 4, L)
        p.v_and_b32(v(100), 15, L)
        p.v_and_b32(v(101), 1, g4)
        p.v_lshl_add_u32(v(101), v(101), 5, v(100))
        p.s_and_b32(t0, sW, 1)
        p.s_lshl_b32(t0, t0, 4)
        p.v_add_u32(v(101), t0, v(101))
        p.v_lshlrev_b32(v(101), 4, v(101))
        p.v_lshl_add_u32(vO, h, 10, v(101))
        p.s_lshl_b32(t0, sT[7], 10)
        p.s_add_u32(t0, t0, WS_O)
        for j in range(8):
            if j and j % 2 == 0:
                p.s_add_u32(t0, t0, 4096)
            p.buffer_load_dwordx4(OF[4 * j:4 * j + 4], vO, rWS, t0, mods=f"offen offset:{(j % 2) * 2048} sc1")
        p.wait(vm="wo")
        self.barrier()
        self.stamp("c3")
        tk = v(102)
        p.v_and_b32(tk, 31, L)
        p.s_and_b32(t0, sW, 1)
        p.s_lshl_b32(t0, t0, 5)
        p.v_add_u32(tk, t0, tk)
        p.v_xor_b32(v(103), h, v(100))
        p.v_lshlrev_b32(v(103), 4, v(103))
        p.v_lshl_add_u32(tk, tk, 8, v(103))
        p.s_lshr_b32(t0, sW, 1)
        p.s_lshl_b32(t0, t0, 14)
        p.s_add_u32(t0, t0, L_RED)
        p.v_add_u32(tk, t0, tk)
        for ct in range(2):
            for j in range(4):
                k = (8 * ct + 2 * j) << 4
                ad = v(136 + 4 * ct + j)
                p.v_xor_b32(ad, k, tk)
                p.ds_write_b128(ad, acc[ct][4 * j:4 * j + 4])
        WO = v(128, 128)
        vB = [v(84), v(85), v(86), v(87)]
        hh = v(88)
        p.v_and_b32(hh, 1, g4)
        p.v_lshlrev_b32(a, 4, h)
        p.v_lshl_add_u32(a, hh, 2, a)
        p.v_add_u32(a, a, r)
        p.v_lshlrev_b32(a, 7, a)
        p.v_lshl_add_u32(a, c, 3, a)
        p.v_lshrrev_b32(v(89), 1, r)
        p.v_lshl_add_u32(v(89), hh, 1, v(89))
        p.s_lshr_b32(t0, sW, 2)
        p.s_lshl_b32(t1, t0, 1)
        p.v_xor_b32(v(89), t1, v(89))
        p.v_lshl_add_u32(a, v(89), 5, a)
        p.s_lshl_b32(t1, t0, 15)
        p.v_add_u32(vB[0], t1, a)
        for ct in range(1, 4):
            p.v_xor_b32(vB[ct], 32 * ct, vB[0])
        vR = [v(92), v(93)]
        p.s_lshl_b32(t1, t0, 3)
        p.v_add_u32(v(89), t1, g4)
        p.v_xor_b32(v(89), v(89), v(100))
        p.v_lshlrev_b32(v(89), 4, v(89))
        p.v_lshl_add_u32(v(89), v(100), 8, v(89))
        p.s_and_b32(t1, sW, 3)
        p.s_lshl_b32(t1, t1, 12)
        p.s_add_u32(t1, t1, L_RED)
        p.v_add_u32(vR[0], t1, v(89))
        p.v_xor_b32(vR[1], 64, vR[0])
        self.barrier()
        self.stamp("c4")
        PR = v(16, 32)
        for kq in range(4):
            for b in range(2):
                p.ds_read_b128(PR[8 * kq + 4 * b:8 * kq + 4 * b + 4], vR[b], mods=f"offset:{kq * 16384}")

        def wo_rd(j):
            for ct in range(4):
                for e in range(2):
                    d = WO[16 * j + 4 * ct + 2 * e:16 * j + 4 * ct + 2 * e + 2]
                    p.ds_read_b64_tr_b16(d, vB[ct], mods=f"offset:{L_WO + j * 4096 + e * 1024}")

        wo_rd(0)
        G = PR[0:8]
        tmp = [v(104 + i) for i in range(8)]
        p.s_mov_b32(t0, f32(-LOG2E))
        for i in range(8):
            p.v_add_f32(PR[i], PR[i], PR[8 + i])
            p.v_add_f32(PR[16 + i], PR[16 + i], PR[24 + i])
        wo_rd(1)
        for i in range(8):
            p.v_add_f32(G[i], PR[i], PR[16 + i])
        for i in range(8):
            p.v_mul_f32(tmp[i], t0, G[i])
        wo_rd(2)
        for i in range(8):
            p.v_exp_f32(tmp[i], tmp[i])
        wo_rd(3)
        for i in range(8):
            p.v_add_f32(tmp[i], 1.0, tmp[i])
        wo_rd(4)
        for i in range(8):
            p.v_rcp_f32(tmp[i], tmp[i])
        wo_rd(5)
        for i in range(8):
            p.v_mul_f32(G[i], G[i], tmp[i])
        wo_rd(6)
        XU = [v(112 + i) for i in range(8)]
        for i in range(4):
            p.v_lshlrev_b32(XU[2 * i], 16, XR[i])
            p.v_and_b32(XU[2 * i + 1], sMASK, XR[i])
        wo_rd(7)
        vEw, vEr = v(92), v(93)
        p.s_lshl_b32(t0, sW, 11)
        p.s_add_u32(t0, t0, L_EX)
        p.v_add_u32(vEw, t0, self.vL16)
        p.s_xor_b32(t1, sW, 4)
        p.s_lshl_b32(t1, t1, 11)
        p.s_add_u32(t1, t1, L_EX)
        p.v_add_u32(vEr, t1, self.vL16)
        self.stamp("g_done")
        SA = v(24, 16)
        for j in range(8):
            for ct in (2, 3, 0, 1):
                d = SA[4 * ct:4 * ct + 4]
                p.I(MF16, d, WO[16 * j + 4 * ct:16 * j + 4 * ct + 4], OF[4 * j:4 * j + 4], 0 if j == 0 else d)
        self.stamp("wo_mm")
        for b in range(2):
            p.ds_write_b128(vEw, SA[8 + 4 * b:12 + 4 * b], mods=f"offset:{b * 1024}")
        self.barrier()
        for b in range(2):
            p.ds_read_b128(SA[8 + 4 * b:12 + 4 * b], vEr, mods=f"offset:{b * 1024}")
        for i in range(8):
            p.v_add_f32(SA[i], SA[i], SA[8 + i])
        for i in range(8):
            p.v_fma_f32(SA[i], SA[i], G[i], XU[i])
        for i in range(4):
            p.v_cvt_pk_bf16_f32(SA[i], SA[2 * i], SA[2 * i + 1])
        for b in range(2):
            p.buffer_store_dwordx2(SA[2 * b:2 * b + 2], vOut, rOUT, sT[6], mods=f"offen offset:{32 * b}")
        p.s_or_b32(t0, sG, sW)
        p.s_cmp_lg_u32(t0, 0)
        p.s_cbranch_scc1("L_noep")
        p.s_mov_b32(t0, WS_E)
        self.flag_store(v(100), v(101), t0)
        p.label("L_noep")
        self.stamp("end")
        if self.o.get("stamp"):
            p.wait_all()
            p.raw("    s_memrealtime s[100:101]")
            p.wait_smem()
            p.s_lshl_b32(t0, sG, 3)
            p.s_add_u32(t0, t0, sW)
            p.s_lshl_b32(t0, t0, 7)
            p.s_add_u32(t0, t0, WS_STAMP)
            p.v_mov_b32(v(1), 0)
            n = len(self.o["stamp_names"])
            vals = STAMP_REGS[:n] + [s(98), s(100)]
            for i, x in enumerate(vals):
                p.v_mov_b32(v(2), x)
                p.buffer_store_dword(v(2), v(1), rWS, t0, mods=f"offen offset:{4 * i}")
                p.wait_all()
        if self.o.get("padto"):
            p.wait_all()
            p.label("L_pad")
            p.raw("    s_memrealtime s[100:101]")
            p.wait_smem()
            p.s_sub_u32(t0, s(100), s(98))
            p.s_cmp_lt_u32(t0, self.o["padto"])
            p.s_cbranch_scc1("L_pad")
        p.label("L_exit")
        p.s_endpgm()

    def build(self):
        p = self.p
        self.entry()
        p.s_cmp_ge_u32(sW, 4)
        p.s_cbranch_scc1("L_hf1")
        st = p.split("lo", True)
        self.layernorm(0)
        self.qkv(0)
        p.s_branch("L_up")
        end0 = p.fork()
        p.restore(st)
        p.label("L_hf1")
        self.layernorm(1)
        self.qkv(1)
        p.label("L_up")
        p.join(end0)
        self.up()
        self.attention()
        self.tail()
        self.slow_path()
        head = open("cdna_kernels/" + NAME[:-7] + ".s.ref").read().split("; Override launch")[0]
        return (head
                + f"; @launch grid=(256,1,1) block=(512,1,1) lds={LDS_BYTES}\n"
                + "; generated by gen/gen.py: one persistent launch, phases LN+QKV | FFN up | attention | FFN down + out projection\n"
                + '.amdgcn_target "amdgcn-amd-amdhsa--gfx950"\n.text\n'
                + f".globl {NAME}\n.p2align 8\n.type {NAME},@function\n{NAME}:\n"
                + p.text()
                + '.section .rodata,"a"\n.p2align 6\n'
                + f".amdhsa_kernel {NAME}\n"
                + "  .amdhsa_next_free_vgpr 256\n  .amdhsa_next_free_sgpr 102\n  .amdhsa_accum_offset 256\n"
                + "  .amdhsa_group_segment_fixed_size 0\n  .amdhsa_kernarg_size 80\n"
                + "  .amdhsa_user_sgpr_count 2\n  .amdhsa_user_sgpr_kernarg_segment_ptr 1\n"
                + "  .amdhsa_system_sgpr_workgroup_id_x 1\n.end_amdhsa_kernel\n")


def generate(**opt):
    if opt.get("stamp"):
        opt["stamp_names"] = {}
    g = Gen(opt)
    text = g.build()
    return text, g


if __name__ == "__main__":
    out = sys.argv[1] if len(sys.argv) > 1 else "cdna_kernels/" + NAME[:-7] + ".s"
    opt = eval(sys.argv[2]) if len(sys.argv) > 2 else {}
    text, g = generate(**opt)
    open(out, "w").write(text)
    print("written", out, "instr counts", g.p.count, "nop states", g.p.nops, file=sys.stderr)
    if opt.get("stamp"):
        print(g.o["stamp_names"], file=sys.stderr)
```

```python
import struct
import sys

from asmdsl import Abs, Neg, Prog, s, v

NAME = "recurrent_scan__softmax_full_mha__glu_gated_swiglu__prompt_kernel"


def f32(x):
    return struct.unpack("<I", struct.pack("<f", x))[0]


WS_E = 0
WS_FQ = 0x1000
WS_FH = 0x2000
WS_FO = 0x4000
WS_Q = 0x10000
WS_K = WS_Q + 0x200000
WS_V = WS_K + 0x200000
WS_O = WS_V + 0x200000
WS_H = WS_O + 0x200000
WS_STAMP = WS_H + 64 * 112 * 1024
WS_END = WS_STAMP + 256 * 8 * 128

LDS_BYTES = 163840
L_XST = 0
L_WQ = 65536
UP_SLOT = ([65536 + 8192 * i for i in range(3)] + [8192 * i for i in range(8)]
           + [98304 + 8192 * i for i in range(8)] + [90112]
           + [65536 + 8192 * i for i in range(3)] + [8192 * i for i in range(8)] + [98304])
L_RS = 90112
VB = 1056
CH = 8192 + 8 * VB
CH_BASE = [LDS_BYTES - 3 * CH + CH * i for i in range(3)] + [4 * CH] + [CH * i for i in range(4)]
SL_F = [5 * CH + 8192 * i for i in range(3)]
SL_P = [4 * CH, 4 * CH + 8192] + [5 * CH + 8192 * (3 + i) for i in range(6)]
SL_R = [8192 * i for i in range(8)]
W2_SLOT = SL_F + SL_P + SL_R + SL_F + SL_P[:6]
assert CH_BASE[0] >= 106496 and SL_F[2] + 8192 <= CH_BASE[0] and SL_P[7] + 8192 <= LDS_BYTES and (4 * CH) % 256 == 0 and (5 * CH) % 256 == 0
L_WO = 0
L_RED = 4 * CH
L_EX = L_RED + 65536

LOG2E = 1.4426950408889634
QSCALE = 0.25 * LOG2E
M_OFF = 100.0
SPIN_MAX = 1 << 18
PRIO_DEFAULT = {-1: 3, 18: 2, 26: 1, 29: 0, 31: 3, 50: 2, 58: 1, 61: 0}
PF_DEFAULT = dict(w1=(4, 'b2'), w3=(5, 'b2'))

sKARG = s(0, 2)
sG = s(2)
pX, pWQ, pWO, pW1, pW3, pW2, pOUT, pWS = s(4, 2), s(6, 2), s(8, 2), s(12, 2), s(14, 2), s(16, 2), s(18, 2), s(22, 2)
rX, rWQ, rWO, rW1, rW3, rW2, rOUT, rWS = (s(24 + 4 * i, 4) for i in range(8))
sW, sRB, sCB, sHEAD, sQB, sEP = s(56), s(57), s(58), s(59), s(60), s(63)
sR3, sC3 = sHEAD, sQB
sT = [s(64 + i) for i in range(8)]
sA, sB, sUPk = s(72), s(73), s(74)
sW1024, sW1040, sKV = s(75), s(76), s(77)
sSLOW, sSPIN = s(78), s(79)
sMASK, sONES = s(61), s(62)
sV2 = s(80, 2)
sPAR, sC10, sC01 = s(82), s(83), s(3)
sROT, sWL, sROT2 = s(20), s(21), s(10)
rWU = s(84, 4)
STAMP_REGS = [s(88 + i) for i in range(10)] + [s(4 + i) for i in range(6)] + [s(11 + i) for i in range(9)]


class Gen:
    def __init__(self, opt):
        self.o = opt
        self.p = Prog()
        self.nstamp = 0
        e = self.p.expect
        e.update({f"wq{i}": 6 for i in range(4)})
        self.p.optional |= {f"wq{i}" for i in range(4)}
        self.p.optional |= {f"up{i}" for i in range(11)}
        e.update({f"kv{i}": 2 for i in range(8)})
        e.update({f"w2_{i}": 1 for i in range(28)})
        e.update({"wo": 8, "o": 1})
        self.p.optional.add("h")
        self.nlab = 0

    def stamp(self, name):
        if not self.o.get("stamp"):
            return
        if name in self.o.get("nostamp", ()):
            return
        if "only" in self.o and name not in self.o["only"] and name != "entry":
            return
        if "only" not in self.o and (name.startswith("pre") or name.startswith("wt")):
            return
        p = self.p
        i = self.o["stamp_names"].setdefault(name, len(self.o["stamp_names"]))
        p.raw("    s_memrealtime s[100:101]" if self.o["stamp"] == "rt" else "    s_memtime s[100:101]")
        p.wait_smem()
        p.s_mov_b32(STAMP_REGS[i], s(100))

    def srd(self, r, ptr, nbytes):
        p = self.p
        p.s_mov_b32(r[0], ptr[0])
        p.s_mov_b32(r[1], ptr[1])
        p.s_mov_b32(r[2], nbytes)
        p.s_mov_b32(r[3], 0x00020000)

    def lab(self, base):
        self.nlab += 1
        return f"L_{base}_{self.nlab}"

    def barrier(self):
        self.p.wait(lg="*")
        self.p.s_barrier()

    def dma(self, voff, srd, soff, m0val, tag, m0add=None, sc1=False):
        p = self.p
        if m0add is None:
            p.s_mov_b32("m0", m0val)
        else:
            p.s_add_u32("m0", m0add, m0val)
        p.buffer_load_dwordx4(voff, srd, soff, mods="offen sc1 lds" if sc1 else "offen lds", tag=tag)

    def poll_issue(self, dst, vaddr, soff):
        self.p.buffer_load_dword(dst, vaddr, rWS, soff, mods="offen sc1")

    def poll_check(self, dst, vaddr, soff):
        p = self.p
        ok, again = self.lab("ok"), self.lab("poll")
        p.v_cmp_ne_u32("vcc", sEP, dst)
        p.s_cbranch_vccz(ok)
        p.s_mov_b32(sSPIN, SPIN_MAX)
        p.label(again)
        p.raw(f"    s_sleep {self.o.get('backoff', 4)}")
        p.raw(f"    buffer_load_dword {dst}, {vaddr}, {rWS}, {soff} offen sc1")
        p.raw("    s_waitcnt vmcnt(0)")
        p.raw(f"    v_cmp_ne_u32 vcc, {sEP}, {dst}")
        p.raw(f"    s_cbranch_vccz {ok}")
        p.raw(f"    s_sub_u32 {sSPIN}, {sSPIN}, 1")
        p.raw(f"    s_cmp_lg_u32 {sSPIN}, 0")
        p.raw(f"    s_cbranch_scc1 {again}")
        p.label(ok)

    def flag_store(self, vtmp, vtmp2, soff):
        p = self.p
        p.v_mov_b32(vtmp, sEP)
        p.v_mov_b32(vtmp2, 0)
        p.s_mov_b64("exec", 1)
        p.buffer_store_dword(vtmp, vtmp2, rWS, soff, mods="offen sc1", tag="flag")
        p.s_mov_b64("exec", -1)

    def wq_dma(self, kk):
        p = self.p
        for q in range(3):
            def one(q=q):
                if q == 0:
                    p.s_add_u32(sT[6], sT[4], 4 * kk)
                    p.s_and_b32(sT[6], sT[6], 31)
                    p.s_mul_i32(sT[6], sT[6], 49152)
                    p.s_add_u32(sT[6], sT[6], sT[5])
                self.dma(self.pat[q], rWQ, sT[6], L_WQ + kk * 4 * 3072 + q * 1024, f"wq{kk // 2}", m0add=sT[7])
            self.q.append(one)

    def only(self, lo_half, body):
        p = self.p
        skip = self.lab("only")
        p.s_cmp_ge_u32(sW, 4)
        if lo_half:
            p.s_cbranch_scc1(skip)
        else:
            p.s_cbranch_scc0(skip)
        st0 = p.split("lo", lo_half)
        body()
        p.label(skip)
        p.join(st0)

    def when(self, key, cmp_op, val, body):
        p = self.p
        skip = self.lab("when")
        p.I(f"s_cmp_{cmp_op}_u32", sW, val)
        p.s_cbranch_scc0(skip)
        st0 = p.split(key[0], key[1])
        body()
        p.label(skip)
        p.join(st0)

    def prefetch(self, wave, srd, nlines, tmp, dst):
        p = self.p
        skip = self.lab("pf")
        p.s_cmp_lg_u32(sW, wave)
        p.s_cbranch_scc1(skip)
        st0 = p.fork()
        p.s_mul_i32(sT[2], sG, nlines * 128)
        p.v_lshlrev_b32(tmp, 7, self.vL)
        p.s_mov_b64("exec", (1 << nlines) - 1 if nlines < 32 else -1)
        if 32 <= nlines < 64:
            p.s_mov_b32("exec_hi", (1 << (nlines - 32)) - 1)
        p.buffer_load_dword(dst, tmp, srd, sT[2], mods="offen")
        p.s_mov_b64("exec", -1)
        p.label(skip)
        p.join(st0)

    def pf_at(self, where):
        for nm_, (wv, at) in self.o.get("pf", PF_DEFAULT).items():
            if at == where:
                srd_, n_ = {"wq": (rWQ, 48), "w1": (rW1, 56), "w3": (rW3, 56), "w2": (rW2, 56)}[nm_]
                self.prefetch(wv, srd_, n_, v(29), v(30))

    def drip(self, n=1):
        for _ in range(n):
            if self.q:
                self.q.pop(0)()

    def gemm_stream(self, n, read, mfma, depth, bars=None, extra=None):
        p = self.p
        bars = bars or {}
        passed = set()
        st = {"nxt": 0}

        def issue(i):
            while st["nxt"] < n and st["nxt"] <= i + depth and not any(
                    f <= st["nxt"] and f not in passed for f in bars):
                read(st["nxt"])
                st["nxt"] += 1

        for i in range(-depth, n):
            for f, (lead, pre, post) in sorted(bars.items()):
                if f not in passed and i == f - lead:
                    assert st["nxt"] == min(f, n), (st["nxt"], f)
                    if pre:
                        pre()
                    self.barrier()
                    passed.add(f)
                    issue(i)
                    if post:
                        post()
            if i >= 0:
                mfma(i)
            issue(i)
            if extra and i >= 0:
                extra(i)

    def entry(self):
        p = self.p
        p.s_cmp_ge_u32(sG, 256)
        p.s_cbranch_scc1("L_exit")
        if self.o.get("stamp") or self.o.get("padto"):
            p.raw("    s_memrealtime s[98:99]")
        self.stamp("entry")
        p.raw("    s_load_dwordx16 s[4:19], s[0:1], 0")
        p.raw("    s_load_dwordx4 s[20:23], s[0:1], 64")
        self.vL = v(0)
        p.v_lshrrev_b32(v(1), 6, v(0))
        p.v_and_b32(v(0), 63, v(0))
        p.v_readfirstlane_b32(sW, v(1))
        t0, t1, t2 = sT[0], sT[1], sT[2]
        p.s_and_b32(t0, sG, 7)
        p.s_bfe_u32(sQB, sG, 0x30003)
        p.s_lshr_b32(t1, sG, 6)
        p.s_lshl_b32(t2, t0, 2)
        p.s_add_u32(sHEAD, t2, t1)
        p.s_and_b32(sT[3], t0, 3)
        p.s_and_b32(sT[4], sQB, 3)
        p.s_lshl_b32(t2, sT[3], 2)
        p.s_add_u32(sRB, t2, sT[4])
        p.s_lshr_b32(t2, t0, 2)
        p.s_lshl_b32(t2, t2, 3)
        p.s_lshr_b32(t1, sG, 5)
        p.s_add_u32(sCB, t2, t1)
        self.vXa = v(1)
        p.v_lshrrev_b32(v(2), 2, self.vL)
        p.v_and_b32(v(3), 3, self.vL)
        p.v_lshlrev_b32(v(2), 10, v(2))
        p.v_lshl_add_u32(self.vXa, v(3), 4, v(2))
        p.s_add_u32(t0, sW, sCB)
        p.s_and_b32(sT[5], t0, 7)
        p.s_lshl_b32(t0, sT[4], 2)
        p.s_add_u32(sT[6], t0, sT[3])
        p.s_lshl_b32(t0, sRB, 17)
        p.s_lshl_b32(t1, sT[5], 14)
        p.s_add_u32(t0, t0, t1)
        p.s_lshl_b32(t1, sT[6], 6)
        p.s_add_u32(sB, t0, t1)
        p.s_add_u32(sA, sB, 1024)
        p.s_mov_b32(rX[2], 2048 * 1024 + 1024)
        p.s_mov_b32(rX[3], 0x00020000)
        self.X = v(64, 64)
        self.XF = v(128, 128)

    def xload(self, i):
        p = self.p
        if i:
            p.s_cmp_ge_u32(sROT, 16 - i)
            p.s_cselect_b32(sT[2], sB, sA)
        p.buffer_load_dwordx4(self.X[4 * i:4 * i + 4], self.vXa, rX, sT[2] if i else sA, mods=f"offen offset:{64 * i}")

    def addr_setup(self, hf):
        p = self.p
        L = self.vL
        t0, t1, t2 = sT[0], sT[1], sT[2]
        p.raw(f"    s_load_dword {sEP}, {pWS}, {WS_E}")
        p.s_mov_b32(sMASK, 0xFFFF0000)
        p.s_mov_b32(sONES, 0x3F803F80)
        p.s_mov_b32(sC10, 0x00003F80)
        p.s_mov_b32(sC01, 0x3F800000)
        p.s_lshl_b32(sW1024, sW, 10)
        p.s_mul_i32(sW1040, sW, VB)
        p.s_and_b32(sPAR, sCB, 1)
        self.srd(rWQ, pWQ, 512 * 3072)
        self.srd(rW1, pW1, 512 * 3584)
        self.srd(rW3, pW3, 512 * 3584)
        self.srd(rWU, pW3 if hf else pW1, 512 * 3584)
        self.srd(rWS, pWS, WS_END)
        self.srd(rW2, pW2, 1792 * 1024)
        self.srd(rWO, pWO, 512 * 1024)
        self.srd(rOUT, pOUT, 2048 * 1024)
        p.s_and_b32(t0, sR3, 3)
        p.s_mul_i32(t0, t0, 7)
        p.s_lshr_b32(t1, sR3, 2)
        p.s_min_u32(t1, t1, 6)
        p.s_add_u32(sROT2, t0, t1)
        p.s_lshl_b32(sUPk, sROT, 1)
        p.s_lshl_b32(t0, sHEAD, 16)
        p.s_add_u32(sKV, t0, sW1024)
        a, b, d = v(16), v(17), v(18)
        self.vWr, self.vXe, self.vXo = v(13), v(14), v(15)
        p.v_and_b32(a, 3, L)
        p.v_lshrrev_b32(b, 2, L)
        p.s_and_b32(t0, sWL, 1)
        p.s_lshl_b32(t0, t0, 4)
        p.v_add_u32(b, t0, b)
        p.v_lshlrev_b32(d, 1, a)
        p.v_xor_b32(b, b, d)
        p.v_lshlrev_b32(b, 4, b)
        p.v_lshrrev_b32(d, 1, a)
        p.v_lshl_add_u32(b, d, 12, b)
        p.v_and_b32(d, 1, a)
        p.v_lshl_add_u32(b, d, 9, b)
        p.s_lshr_b32(t0, sWL, 1)
        p.s_lshl_b32(t0, t0, 10)
        p.v_add_u32(self.vWr, t0, b)
        mh, h, r, c = v(19), v(20), v(21), v(22)
        p.v_bfe_u32(mh, L, 4, 1)
        p.v_lshrrev_b32(h, 5, L)
        p.v_bfe_u32(r, L, 2, 2)
        p.v_and_b32(c, 3, L)
        p.v_and_b32(a, 31, L)
        p.v_lshlrev_b32(d, 1, h)
        p.v_xor_b32(a, a, d)
        p.v_lshlrev_b32(a, 4, a)
        p.v_lshl_add_u32(a, h, 9, a)
        p.s_and_b32(t0, sW, 3)
        p.s_lshl_b32(t0, t0, 10)
        p.v_add_u32(self.vXe, t0, a)
        p.v_xor_b32(self.vXo, 64, self.vXe)
        self.vWQ = [v(4), v(5)]
        p.v_lshl_add_u32(a, h, 3, r)
        p.v_mul_u32_u24(b, 192, a)
        p.v_lshl_add_u32(b, mh, 5, b)
        p.v_lshl_add_u32(b, c, 3, b)
        p.v_add_u32(self.vWQ[0], L_WQ, b)
        p.v_add_u32(self.vWQ[1], L_WQ + 49152, b)
        self.vUP = [v(6), v(7), v(8), v(9)]
        p.v_lshlrev_b32(a, 8, a)
        p.v_lshl_add_u32(a, mh, 12, a)
        p.v_lshl_add_u32(a, c, 3, a)
        p.v_lshl_add_u32(b, mh, 2, r)
        if hf:
            p.v_xor_b32(b, 4, b)
        p.v_lshl_add_u32(self.vUP[0], b, 5, a)
        for k in range(1, 4):
            p.v_xor_b32(self.vUP[k], 32 * k, self.vUP[0])
        self.vUD = v(12)
        p.v_lshrrev_b32(a, 4, L)
        p.v_lshlrev_b32(b, 1, a)
        if hf:
            p.v_xor_b32(b, 8, b)
        p.v_and_b32(d, 15, L)
        p.v_xor_b32(b, b, d)
        p.v_mul_u32_u24(a, 3584, a)
        p.v_lshl_add_u32(a, b, 4, a)
        p.s_and_b32(t0, sW, 3)
        p.s_mul_i32(t0, t0, 4 * 3584)
        p.s_lshl_b32(t1, sCB, 8)
        p.s_add_u32(t0, t0, t1)
        p.s_cmp_ge_u32(sCB, 14)
        p.s_cselect_b32(t1, 0x40000000, 0)
        p.s_add_u32(t0, t0, t1)
        p.v_add_u32(self.vUD, t0, a)
        self.vL16, self.vSt = v(10), v(11)
        p.v_lshlrev_b32(self.vL16, 4, L)
        if hf == 0:
            p.v_and_b32(a, 0x33, L)
            p.v_bfe_u32(b, L, 2, 1)
            p.v_lshl_add_u32(a, b, 3, a)
            p.v_bfe_u32(b, L, 3, 1)
            p.v_lshl_add_u32(a, b, 2, a)
            p.v_lshlrev_b32(a, 4, a)
            p.s_cmp_eq_u32(sPAR, 0)
            p.s_cselect_b64("vcc", -1, 0)
            p.v_cndmask_b32(self.vSt, a, self.vL16, "vcc")
            p.s_mov_b32(t2, 43691)
            p.s_lshl_b32(t0, sPAR, 10)
            p.s_lshl_b32(t1, sPAR, 6)
            p.s_add_u32(t1, t1, 2048 - 128)
            p.v_mov_b32(mh, t0)
            p.v_mov_b32(h, t1)
            self.pat = [v(24), v(25), v(26)]
            for q in range(3):
                p.v_add_u32(a, 64 * q, L)
                p.v_mul_u32_u24(b, t2, a)
                p.v_lshrrev_b32(b, 19, b)
                p.v_mul_u32_u24(d, 12, b)
                p.v_sub_u32(a, a, d)
                p.v_cmp_le_u32("vcc", 8, a)
                p.v_mul_u32_u24(b, 3072, b)
                p.v_lshl_add_u32(b, a, 4, b)
                p.v_cndmask_b32(d, mh, h, "vcc")
                p.v_add_u32(self.pat[q], d, b)
            p.s_lshr_b32(t1, sCB, 1)
            p.s_lshl_b32(sT[5], t1, 7)
            p.s_add_u32(sT[4], sUPk, sW)
            p.s_mul_i32(sT[7], sW, 3072)
        else:
            p.v_and_b32(a, 15, L)
            p.v_lshl_add_u32(a, h, 4, a)
            p.v_lshlrev_b32(a, 4, a)
            p.v_lshl_add_u32(self.vSt, mh, 16, a)
        p.wait_smem()
        p.s_mul_i32(sEP, sEP, 0x9E3779B1)
        p.s_add_u32(sEP, sEP, 0x7F4A7C15)

    def code_prefetch(self):
        p = self.p
        skip = self.lab("cp")
        rC = s(68, 4)
        p.s_cmp_lg_u32(sW, 4)
        p.s_cbranch_scc1(skip)
        st0 = p.fork()
        p.raw(f"    s_getpc_b64 {rC[0:2]}")
        p.label("L_pc")
        p.s_sub_u32(rC[0], rC[0], f"L_pc-{NAME}")
        p.s_subb_u32(rC[1], rC[1], 0)
        p.s_mov_b32(rC[2], f"L_code_end-{NAME}")
        p.s_mov_b32(rC[3], 0x00020000)
        p.s_lshr_b32(sT[1], sG, 3)
        p.s_mul_i32(sT[1], sT[1], 10)
        p.v_add_u32(v(29), sT[1], self.vL)
        p.v_lshlrev_b32(v(29), 7, v(29))
        p.s_mov_b64("exec", 0x3FF)
        p.buffer_load_dword(v(30), v(29), rC, 0, mods="offen")
        p.s_mov_b64("exec", -1)
        p.label(skip)
        p.join(st0)

    def layernorm(self, hf):
        p = self.p
        o = self.o
        X, L = self.X, self.vL
        p.wait_smem()
        p.s_sub_u32(rX[0], pX[0], 1024)
        p.s_subb_u32(rX[1], pX[1], 0)
        p.s_mov_b32(sWL, sT[5])
        p.s_mov_b32(sROT, sT[6])
        self.stamp("start")
        sa, sb, qa, qb, vOne = v(32), v(33), v(34), v(35), v(36)

        def stat(i):
            for j in range(2):
                a, b = X[4 * i + 2 * j], X[4 * i + 2 * j + 1]
                first = i == 0 and j == 0
                p.v_dot2_f32_bf16(sa, a, vOne, 0 if first else sa)
                p.v_dot2_f32_bf16(qa, a, a, 0 if first else qa)
                p.v_dot2_f32_bf16(sb, b, vOne, 0 if first else sb)
                p.v_dot2_f32_bf16(qb, b, b, 0 if first else qb)

        D = o.get("xdepth", 12)
        if hf == 1:
            if o.get("codepf", 1):
                self.code_prefetch()
            self.addr_setup(hf)
        early = o.get("wq_early", 0)
        if hf == 0 and early:
            def first():
                for i in range(D):
                    self.xload(i)

            def second():
                for i in range(4):
                    p.s_add_u32(sT[6], sT[4], 2 * i - 2)
                    p.s_and_b32(sT[6], sT[6], 31)
                    p.s_mul_i32(sT[6], sT[6], 49152)
                    p.s_add_u32(sT[6], sT[6], sT[5])
                    for q in range(3):
                        self.dma(self.pat[q], rWQ, sT[6], L_WQ + (2 * i - 2) * 3072 + q * 1024, "wq0", m0add=sT[7])
                first()
            self.when(("w01", True), "lt", 2, first)
            self.addr_setup(hf)
            self.when(("w01", False), "ge", 2, second)
            del p.expect["wq0"]
        else:
            for i in range(D):
                self.xload(i)
            if hf == 0:
                self.addr_setup(hf)
        p.v_mov_b32(vOne, sONES)
        self.stamp("pre_stat")
        for i in range(16):
            if i + D < 16:
                self.xload(i + D)
            stat(i)
        self.stamp("x_in")
        self.pf_at(f"xin{hf}")
        p.v_add_f32(sa, sa, sb)
        p.v_add_f32(qa, qa, qb)
        dp = "row_mask:0xf bank_mask:0xf"
        p.v_add_f32_dpp(sb, sa, sa, mods="quad_perm:[1,0,3,2] " + dp)
        p.v_add_f32_dpp(qb, qa, qa, mods="quad_perm:[1,0,3,2] " + dp)
        p.v_add_f32_dpp(sa, sb, sb, mods="quad_perm:[2,3,0,1] " + dp)
        p.v_add_f32_dpp(qa, qb, qb, mods="quad_perm:[2,3,0,1] " + dp)
        nm = sb
        p.v_mul_f32(nm, f32(-1.0 / 512), sa)
        p.v_mul_f32(qa, f32(1.0 / 512), qa)
        p.v_fma_f32(qa, Neg(nm), nm, qa)
        p.v_max_f32(qa, 0, qa)
        self.vVe, self.vRs = v(2), v(3)
        p.v_add_f32(self.vVe, f32(1e-5), qa)
        p.v_rsq_f32(self.vRs, self.vVe)
        tmp = [v(40 + i) for i in range(8)]

        def norm(i):
            g = X[4 * i:4 * i + 4]
            for j in range(4):
                p.v_dot2_f32_bf16(tmp[2 * j], g[j], sC10, nm)
                p.v_dot2_f32_bf16(tmp[2 * j + 1], g[j], sC01, nm)
            for j in range(4):
                p.v_cvt_pk_bf16_f32(g[j], tmp[2 * j], tmp[2 * j + 1])

        self.q = []
        n1 = o.get("wq_n1", 4)
        for i in range(8):
            norm(i)
            self.xwrite(i)
        self.stamp("ln_h0")
        if hf == 0:
            for i in range(8, 16):
                norm(i)
            for kk in range(2 if early else 0, n1):
                self.wq_dma(kk)
            self.drip(100)
            self.pf_at("h1")
        self.barrier()
        self.stamp("ln_b1")
        for i in range(8, 16):
            self.xread(2 * (i - 8))
            self.xread(2 * (i - 8) + 1)
            if hf == 1:
                norm(i)
        if hf == 0:
            for kk in range(n1, 8):
                self.wq_dma(kk)
            self.drip(100)

    def xwrite(self, i):
        self.p.ds_write_b128(self.vWr, self.X[4 * i:4 * i + 4], mods=f"offset:{L_XST + (i % 8) * 8192}")

    def xread(self, ks):
        a = self.vXo if ks & 1 else self.vXe
        self.p.ds_read_b128(self.XF[4 * ks:4 * ks + 4], a, mods=f"offset:{L_XST + (ks % 16) * 4096}")

    def up_src(self, ks):
        p = self.p
        t0 = sT[0]
        p.s_add_u32(t0, sUPk, ks)
        p.s_and_b32(t0, t0, 31)
        p.s_mul_i32(t0, t0, 16 * 3584)

    def up_dma(self, ks):
        def one():
            if self.o.get("x_nodma"):
                self.p.optional.add(f"up{ks}")
                return
            self.up_src(ks)
            if self.o.get("x_oob"):
                self.p.s_mov_b32(sT[0], 0x7000000)
            if self.o.get("x_same"):
                self.p.s_mov_b32(sT[0], 0)
            self.dma(self.vUD, rWU, sT[0], UP_SLOT[ks], f"up{ks}", m0add=sW1024)
        self.q.append(one)

    def up_dma2(self, ks):
        def one():
            self.up_src(ks)
            self.dma(self.vUD, rW3, sT[0], UP_SLOT[ks], f"up{ks}", m0add=sW1024)
            self.dma(self.vUD2, rW1, sT[0], UP_SLOT[ks] - 4096, f"up{ks}", m0add=sW1024)
        self.q.append(one)

    def kv_dma(self, c):
        p = self.p
        t0 = sT[0]

        def src(base):
            p.s_add_u32(t0, sQB, c)
            p.s_and_b32(t0, t0, 7)
            p.s_lshl_b32(t0, t0, 13)
            p.s_add_u32(t0, t0, sKV)
            p.s_add_u32(t0, t0, base)

        def k():
            src(WS_K)
            self.dma(self.vL16, rWS, t0, CH_BASE[c], f"kv{c}", m0add=sW1024, sc1=True)

        def vv():
            src(WS_V)
            self.dma(self.vL16, rWS, t0, CH_BASE[c] + 8192, f"kv{c}", m0add=sW1040, sc1=True)
        self.q += [k, vv]

    def kv_ones(self, c0, n):
        p = self.p
        p.s_add_u32(sT[0], sW1040, CH_BASE[c0] + 8192 + 1024)
        p.v_lshrrev_b32(v(31), 1, self.vL)
        p.v_mul_u32_u24(v(31), CH, v(31))
        p.v_and_b32(v(29), 1, self.vL)
        p.v_lshl_add_u32(v(31), v(29), 4, v(31))
        p.v_add_u32(v(31), sT[0], v(31))
        p.s_mov_b64("exec", (1 << (2 * n)) - 1)
        p.ds_write_b128(v(31), self.vOnes4)
        p.s_mov_b64("exec", -1)

    def q_load(self):
        p = self.p
        t0 = sT[0]
        p.s_lshl_b32(t0, sQB, 13)
        p.s_add_u32(t0, t0, sKV)
        p.s_add_u32(t0, t0, WS_Q)
        p.buffer_load_dwordx4(self.vQ, self.vL16, rWS, t0, mods="offen sc1")

    def qkv(self, hf):
        p = self.p
        L = self.vL
        XF = self.XF
        ring = [v(32 + 4 * i, 4) for i in range(8)]
        acc = [v(64 + 16 * i, 16) for i in range(4)]
        t0, t1 = sT[0], sT[1]
        MF = "v_mfma_f32_32x32x16_bf16"
        self.q = []
        o = self.o

        def w(*tags):
            return lambda: p.wait(vm=list(tags))

        tiles = [0, 1] if hf == 0 else [2]
        nt = len(tiles)
        depth = o.get("qkv_depth", (5, 4))[hf]

        def rd(i):
            ks, T = i // nt, tiles[i % nt]
            for e in range(2):
                off = (ks % 16) * 3072 + e * 768 + T * 64
                p.ds_read_b64_tr_b16(ring[i % 8][2 * e:2 * e + 2], self.vWQ[ks // 16], mods=f"offset:{off}")

        def mm(i):
            ks, k = i // nt, i % nt
            x, w_ = XF[4 * ks:4 * ks + 4], ring[i % 8]
            a, b = (w_, x) if hf == 0 else (x, w_)
            p.I(MF, acc[k], a, b, 0 if ks == 0 else acc[k])

        B3, B4 = 8, 16

        def ex(i):
            ks, k = i // nt, i % nt
            if hf == 0 and i < 8:
                self.xwrite(8 + i)
            if k == 0 and B3 - 1 <= ks < B3 + 3:
                for z in range(4):
                    self.xread(16 + 4 * (ks - B3 + 1) + z)
            if hf == 1 and ks % 2 == 0:
                self.drip()

        def post3():
            self.stamp("qb3")
            if hf == 1:
                for ks in range(3):
                    self.up_dma2(ks)

        def post4():
            self.stamp("qb4")
            p.v_lshrrev_b32(v(16), 2, L)
            p.s_lshl_b32(t0, sWL, 4)
            p.s_add_u32(t0, t0, L_RS // 4)
            p.v_add_lshl_u32(v(16), t0, v(16), 2)
            p.ds_write_b32(v(16), self.vRs)
            p.ds_write_b32(v(16), self.vVe, mods="offset:512")
            if hf == 1:
                for ks in range(3, 11):
                    self.up_dma2(ks)

        if hf == 1:
            self.vUD2 = v(1)
            p.v_xor_b32(self.vUD2, 128, self.vUD)
        p.wait(vm="wq0")
        self.barrier()
        self.stamp("ln_done")
        if hf == 1:
            for i in range(8, 16):
                self.xwrite(i)
            self.pf_at("b2")
        lead = o.get("lead", 2)
        self.gemm_stream(32 * nt, rd, mm, depth,
                         {B3 * nt: (lead, w("wq1"), post3), B4 * nt: (lead, w("wq2", "wq3"), post4)}, ex)
        self.stamp("qkv_pre")
        self.drip(100)
        p.wait(vm=["up0", "up1", "up2", "up3"])
        self.barrier()
        self.stamp("qkv_mm")
        rs, ve = self.vRs, self.vVe
        p.v_and_b32(v(16), 31, L)
        p.s_and_b32(t1, sW, 3)
        p.s_lshl_b32(t0, t1, 7)
        p.s_add_u32(t0, t0, L_RS)
        p.v_lshl_add_u32(v(16), v(16), 2, t0)
        p.ds_read_b32(rs, v(16))
        p.ds_read_b32(ve, v(16), mods="offset:512")
        if hf == 1:
            RV = acc[1]
            p.v_lshrrev_b32(v(17), 5, L)
            p.v_lshl_add_u32(v(17), v(17), 4, t0)
            for j in range(4):
                p.ds_read_b128(RV[4 * j:4 * j + 4], v(17), mods=f"offset:{32 * j}")
        p.s_lshl_b32(t0, sRB, 2)
        p.s_add_u32(sT[3], t0, t1)
        p.s_lshl_b32(t0, sT[3], 10)
        p.s_lshr_b32(t1, sCB, 1)
        p.s_lshl_b32(t1, t1, 18)
        p.s_add_u32(sT[2], t0, t1)
        if hf == 0:
            p.s_cmp_eq_u32(sPAR, 0)
            p.s_cselect_b32(t1, f32(QSCALE), 1.0)
            p.s_cselect_b32(t0, 0, WS_K - WS_Q)
            p.s_add_u32(sT[2], sT[2], t0)
            p.s_add_u32(sT[2], sT[2], WS_Q)
            p.v_mul_f32(v(16), t1, rs)
            for T in range(2):
                for i in range(16):
                    p.v_mul_f32(acc[T][i], v(16), acc[T][i])
                for i in range(8):
                    p.v_cvt_pk_bf16_f32(acc[T][i], acc[T][2 * i], acc[T][2 * i + 1])
                for hd in range(2):
                    p.s_add_u32(t0, sT[2], (2 * T + hd) * 65536)
                    p.buffer_store_dwordx4(acc[T][4 * hd:4 * hd + 4], self.vSt, rWS, t0, mods="offen sc1", tag="qkv")
        else:
            for i in range(16):
                p.v_mul_f32(acc[0][i], RV[i], acc[0][i])
            for i in range(8):
                p.v_cvt_pk_bf16_f32(acc[0][i], acc[0][2 * i], acc[0][2 * i + 1])
            p.s_lshl_b32(t0, sPAR, 17)
            p.s_add_u32(t0, t0, sT[2])
            p.s_add_u32(t0, t0, WS_V)
            for sx in range(2):
                p.buffer_store_dwordx4(acc[0][4 * sx:4 * sx + 4], self.vSt, rWS, t0,
                                       mods=f"offen offset:{512 * sx} sc1", tag="qkv")
        p.v_mul_f32(rs, f32(-LOG2E), rs)
        self.stamp("qkv_st")

    def publish_qkv(self):
        p = self.p
        t0, t1 = sT[0], sT[1]
        skip = self.lab("nf")
        p.s_cmp_lg_u32(sW, 0)
        p.s_cbranch_scc1(skip)
        st0 = p.fork()
        p.s_lshr_b32(t0, sCB, 1)
        p.s_lshl_b32(t0, t0, 8)
        p.s_lshl_b32(t1, sRB, 3)
        p.s_add_u32(t0, t0, t1)
        p.s_lshl_b32(t1, sPAR, 2)
        p.s_add_u32(t0, t0, t1)
        p.s_add_u32(t0, t0, WS_FQ)
        self.flag_store(v(29), v(30), t0)
        p.label(skip)
        p.join(st0)

    def fq_poll_issue(self, vP, vF32):
        p = self.p
        p.s_lshr_b32(sT[4], sHEAD, 2)
        p.s_lshl_b32(sT[4], sT[4], 8)
        p.s_add_u32(sT[4], sT[4], WS_FQ)
        self.poll_issue(vP, vF32, sT[4])

    def flush_half(self, lo):
        q = list(self.q)
        if q:
            self.only(lo, lambda: [f() for f in q])

    def up(self):
        p = self.p
        L = self.vL
        XF = self.XF
        o = self.o
        ring = [v(32 + 4 * i, 4) for i in range(8)]
        acc = [v(64 + 16 * i, 16) for i in range(4)]
        t0, t1 = sT[0], sT[1]
        MF = "v_mfma_f32_32x32x16_bf16"
        rs, ve = self.vRs, self.vVe
        vP, vF32 = v(28), v(23)
        self.vQ = v(128, 4)
        self.vOnes4 = v(24, 4)
        p.v_and_b32(v(29), 1, L)
        p.v_add_u32(v(29), -1, v(29))
        for i in range(4):
            p.v_and_b32(self.vOnes4[i], sONES, v(29))
        self.vFl = v(13)
        p.v_and_b32(self.vFl, 15, L)
        p.v_lshlrev_b32(self.vFl, 2, self.vFl)
        p.v_and_b32(vF32, 31, L)
        p.v_lshlrev_b32(vF32, 2, vF32)
        self.q = []
        p.s_cmp_ge_u32(sCB, 14)
        p.s_cbranch_scc1("L_noup")
        st_idle = p.split("ffn", True)

        win = [0] * 4

        def rd(i):
            ks, k = i >> 2, i & 3
            a = UP_SLOT[ks]
            if not (win[k] <= a and a + 1024 < win[k] + 65536):
                p.v_add_u32(self.vUP[k], (a - win[k]) & 0xFFFFFFFF, self.vUP[k])
                win[k] = a
            for e in range(2):
                if o.get("x_nord") and i >= 8:
                    continue
                p.ds_read_b64_tr_b16(ring[i % 8][2 * e:2 * e + 2], self.vUP[k], mods=f"offset:{a - win[k] + e * 1024}")

        def mm(i):
            ks, k = i >> 2, i & 3
            p.I(MF, acc[k], ring[i % 8], XF[4 * ks:4 * ks + 4], 0 if ks == 0 else acc[k])

        stag = o.get("stagger", 1)
        PUB, SEE = o.get("pub", 12), 20
        BARS = [4, 8, 12, 16, 20, 24]
        sched = {0: range(11, 15), 4: range(15, 19), 8: range(19, 23), 12: range(23, 27), 16: range(27, 31), 20: [31]}

        def start_interval(b):
            for ks in sched.get(b, []):
                self.up_dma(ks)
            if b == SEE:
                self.stamp("q_seen")
                for c in range(3):
                    self.kv_dma(c)
                self.q.insert(3, self.q_load)
                self.kv_ones(0, 3)
            if b == 24:
                self.kv_dma(3)
                self.kv_ones(3, 1)
            if stag and b < SEE:
                self.flush_half(False)

        def mkpre(b):
            def pre():
                if stag and b <= SEE:
                    self.flush_half(True)
                    self.q = []
                self.drip(100)
                nxt = min([x for x in BARS if x > b] + [32])
                self.stamp(f"pre{b}")
                if b == SEE:
                    self.stamp("b3")
                    self.when(("w1", True), "eq", 1, lambda: self.poll_check(vP, vF32, sT[4]))
                p.wait(vm=[f"up{k}" for k in range(b, nxt)] + (["qkv"] if b == PUB else []))
                self.stamp(f"wt{b}")
            return pre

        def mkpost(b):
            def post():
                if b == PUB:
                    self.publish_qkv()
                    self.stamp("q_flag")
                start_interval(b)
            return post

        def ex(i):
            ks, k = i >> 2, i & 3
            if i == 4 * SEE - o.get("polld", 10):
                self.when(("w1", True), "eq", 1, lambda: self.fq_poll_issue(vP, vF32))
            if (not stag or ks >= SEE) and (k == 0 or (k == 2 and len(self.q) > 3)):
                self.drip()

        start_interval(0)
        lead = o.get("lead", 2)
        bars = {4 * b: (lead, mkpre(b), mkpost(b)) for b in BARS}
        self.gemm_stream(128, rd, mm, o.get("up_depth", 6), bars, ex)
        self.drip(100)
        self.stamp("up_mm")
        if -1 in o.get("prio", PRIO_DEFAULT):
            p.s_setprio(o.get("prio", PRIO_DEFAULT)[-1])

        def last_barrier():
            p.wait(vm=["kv0", "kv1", "kv2", "kv3"])
            self.barrier()

        self.only(False, last_barrier)
        p.s_mul_i32(t0, sT[3], 112)
        p.s_lshl_b32(t1, sCB, 3)
        p.s_add_u32(t0, t0, t1)
        p.s_and_b32(t1, sW, 4)
        p.s_add_u32(t0, t0, t1)
        p.s_lshl_b32(t0, t0, 10)
        p.s_add_u32(sT[2], t0, WS_H)
        tmp = [v(32 + i) for i in range(8)]
        for k in range(4):
            g, u = acc[k][0:8], acc[k][8:16]
            for i in range(8):
                p.v_mul_f32(tmp[i], rs, g[i])
            for i in range(8):
                p.v_exp_f32(tmp[i], tmp[i])
            for i in range(8):
                p.v_mul_f32(u[i], g[i], u[i])
            for i in range(8):
                p.v_fma_f32(tmp[i], tmp[i], ve, ve)
            for i in range(8):
                p.v_rcp_f32(tmp[i], tmp[i])
            for i in range(8):
                p.v_mul_f32(u[i], u[i], tmp[i])
            for i in range(4):
                p.v_cvt_pk_bf16_f32(g[i], u[2 * i], u[2 * i + 1])
            p.buffer_store_dwordx4(g[0:4], self.vL16, rWS, sT[2], mods=f"offen offset:{1024 * k} sc1", tag="h")
        self.only(True, last_barrier)
        p.s_branch("L_updone")
        st_main = p.fork()

        p.restore(st_idle)
        p.label("L_noup")
        p.wait(vm="*")
        self.barrier()
        self.publish_qkv()

        def idle_poll():
            self.fq_poll_issue(vP, vF32)
            self.poll_check(vP, vF32, sT[4])
        self.when(("w1", True), "eq", 1, idle_poll)
        self.barrier()
        self.q_load()
        for c in range(4):
            self.kv_dma(c)
        self.drip(100)
        self.kv_ones(0, 3)
        self.kv_ones(3, 1)
        last_barrier()
        p.label("L_updone")
        p.join(st_main)
        self.kv_ones(4, 4)
        self.w2_setup()
        for c in range(4, 8):
            self.kv_dma(c)
        for st in range(3):
            self.w2_dma(st)
        self.stamp("up_done")

    def w2_setup(self):
        p = self.p
        L = self.vL
        t0, t1 = sT[0], sT[1]
        self.vW2D = v(12)
        a, b = v(20), v(21)
        p.v_lshrrev_b32(a, 3, L)
        p.v_bfe_u32(b, L, 4, 1)
        p.v_lshlrev_b32(b, 2, b)
        p.v_and_b32(v(22), 7, L)
        p.v_xor_b32(b, b, v(22))
        p.v_lshlrev_b32(b, 4, b)
        p.v_lshl_add_u32(a, a, 10, b)
        p.s_lshr_b32(t0, sW, 1)
        p.s_mul_i32(t0, t0, 28 * 16 * 1024)
        p.s_and_b32(t1, sW, 1)
        p.s_lshl_b32(t1, t1, 13)
        p.s_add_u32(t0, t0, t1)
        p.s_lshl_b32(t1, sC3, 7)
        p.s_add_u32(t0, t0, t1)
        p.v_add_u32(self.vW2D, t0, a)

    def rot28(self, dst, st, shift):
        p = self.p
        p.s_add_u32(dst, sROT2, st)
        p.s_cmp_ge_u32(dst, 28)
        p.s_cselect_b32(sT[1], 28, 0)
        p.s_sub_u32(dst, dst, sT[1])
        p.s_lshl_b32(dst, dst, shift)

    def w2_dma(self, st):
        p = self.p

        def one():
            self.rot28(sT[0], st, 14)
            self.dma(self.vW2D, rW2, sT[0], W2_SLOT[st], f"w2_{st}", m0add=sW1024)
        self.q.append(one)

    def attention(self):
        p = self.p
        L = self.vL
        t0, t1 = sT[0], sT[1]
        S = [v(16, 16), v(32, 16)]
        O, NM = v(48, 16), v(64, 16)
        Q = self.vQ
        K, V0, V1 = [v(80, 4), v(84, 4)], [v(88, 4), v(92, 4)], [v(96, 4), v(100, 4)]
        vIdx = v(14)
        vK, vV0, vV1 = v(4), v(5), v(6)
        self.H = v(144, 112)
        self.att = dict(S=S, O=O, NM=NM, Q=Q, K=K[0], V0=V0[0], V1=V1[0], vIdx=vIdx)
        MF, SM = "v_mfma_f32_32x32x16_bf16", "v_smfmac_f32_32x32x32_bf16"

        p.v_and_b32(v(7), 15, L)
        p.v_lshrrev_b32(v(8), 5, L)
        p.v_lshl_add_u32(v(8), v(8), 4, v(7))
        p.v_lshlrev_b32(v(8), 4, v(8))
        p.v_min_u32(v(7), 1, v(7))
        p.v_lshlrev_b32(v(7), 4, v(7))
        p.v_add_u32(v(7), 1024, v(7))
        p.v_and_b32(v(15), 16, L)
        p.v_cmp_eq_u32("vcc", 16, v(15))
        p.v_add_u32(v(15), 512, v(8))
        p.v_mov_b32(vK, self.vL16)
        p.v_cndmask_b32(vV0, v(8), v(7), "vcc")
        p.v_cndmask_b32(vV1, v(15), v(7), "vcc")
        p.v_mov_b32(vIdx, 0xDDDD)
        win = {id(vK): 0, id(vV0): 0, id(vV1): 0}

        def rd(dst, areg, addr, tag):
            w = win[id(areg)]
            if not (w <= addr < w + 65536):
                nw = addr & ~0xFF
                p.v_add_u32(areg, (nw - w) & 0xFFFFFFFF, areg)
                win[id(areg)] = w = nw
            p.ds_read_b128(dst, areg, mods=f"offset:{addr - w}", tag=tag)

        def rdK(b, tag=None):
            if b < 64:
                rd(K[b & 1], vK, CH_BASE[b >> 3] + (b & 7) * 1024, tag)

        def rdV(b, sx, tag=None):
            if b < 64:
                rd((V1 if sx else V0)[b & 1], vV1 if sx else vV0, CH_BASE[b >> 3] + 8192 + (b & 7) * VB, tag)

        rdK(0)
        rdK(1)
        rdV(0, 0)
        rdV(0, 1)
        rdV(1, 0)
        p.I(MF, S[0], K[0], Q, 0)
        p.I(MF, S[1], K[1], Q, 0)
        for i in range(16):
            p.v_mov_b32(O[i], 0)
        m = v(7)
        p.v_max3_f32(m, S[0][0], S[0][1], S[0][2])
        for i in range(3, 15, 2):
            p.v_max3_f32(m, S[0][i], S[0][i + 1], m)
        p.v_max3_f32(m, S[0][15], S[1][0], m)
        for i in range(1, 15, 2):
            p.v_max3_f32(m, S[1][i], S[1][i + 1], m)
        p.v_max_f32(m, S[1][15], m)
        p.v_mov_b32(v(8), m)
        p.v_permlane32_swap_b32(m, v(8))
        p.v_max_f32(m, m, v(8))
        p.v_sub_f32(NM[0], f32(-M_OFF), m)
        for i in range(1, 16):
            p.v_mov_b32(NM[i], NM[0])
        p.I(MF, S[0], K[0], Q, NM)
        rdK(2)
        p.s_mov_b32(sSLOW, 0)
        self.stamp("att_start")

        vP = v(15)
        hq = []

        def h_loads():
            def first():
                p.s_lshl_b32(t0, sR3, 1)
                p.s_and_b32(t1, sW, 1)
                p.s_add_u32(t0, t0, t1)
                p.s_mul_i32(t0, t0, 112)
                p.s_lshr_b32(t1, sW, 1)
                p.s_mul_i32(t1, t1, 28)
                p.s_add_u32(t0, t0, t1)
                p.s_add_u32(t0, t0, sROT2)
                p.s_lshl_b32(t0, t0, 10)
                p.s_add_u32(sA, t0, WS_H)
                p.s_sub_u32(sB, sA, 28 * 1024)
            for st in range(28):
                def one(st=st):
                    if st == 0:
                        first()
                    elif st % 4 == 0:
                        p.s_add_u32(sA, sA, 4096)
                        p.s_add_u32(sB, sB, 4096)
                    p.s_cmp_ge_u32(sROT2, 28 - st)
                    p.s_cselect_b32(t0, sB, sA)
                    p.buffer_load_dwordx4(self.H[4 * st:4 * st + 4], self.vL16, rWS, t0,
                                          mods=f"offen offset:{(st % 4) * 1024} sc1")
                hq.append(one)

        h_loads()
        prio = self.o.get("prio", PRIO_DEFAULT)
        MID = 30
        HP = self.o.get("hpoll", 40)
        for b in range(64):
            cur, oth = S[b & 1], S[(b + 1) & 1]
            if b in prio:
                p.s_setprio(prio[b])

            def e(i, j):
                for x in range(i, j):
                    p.v_exp_f32(cur[x], cur[x])
            e(0, 2)
            if b >= 2 and b - 2 < 62:
                p.wait(lg=f"blk{b - 2}")
            if b > 0:
                p.I(SM, O, V1[(b - 1) & 1], oth[8:16], vIdx)
            rdV(b + 1, 1)
            e(2, 5)
            if b < 63:
                p.I(MF, oth, K[(b + 1) & 1], Q, NM)
            if b not in (MID - 1, MID):
                rdK(b + 3)
            if b == 20 and self.o.get("wopf", 1):
                p.s_and_b32(t0, sR3, 3)
                p.s_lshl_b32(t0, t0, 3)
                p.s_add_u32(t0, t0, sW)
                p.s_lshl_b32(t0, t0, 14)
                p.s_lshl_b32(t1, sC3, 7)
                p.s_add_u32(t0, t0, t1)
                p.v_lshlrev_b32(v(7), 10, L)
                p.s_mov_b64("exec", 0xFFFF)
                p.buffer_load_dword(v(104), v(7), rWO, t0, mods="offen")
                p.s_mov_b64("exec", -1)
            if b == HP:
                p.s_lshr_b32(sT[4], sR3, 1)
                p.s_lshl_b32(sT[4], sT[4], 8)
                p.s_add_u32(sT[4], sT[4], WS_FH)
                self.poll_issue(vP, self.vFl, sT[4])
            if b == HP + 4:
                self.poll_check(vP, self.vFl, sT[4])
            if b >= HP + 4 and hq:
                hq.pop(0)()
            e(5, 10)
            p.I(SM, O, V0[b & 1], cur[0:8], vIdx)
            if b == MID:
                p.wait(vm=["kv4", "kv5", "kv6", "kv7", "h"])
                self.barrier()
                rdK(b + 2)
                rdK(b + 3)

                def pub():
                    p.s_lshl_b32(t0, sRB, 8)
                    p.s_lshl_b32(t1, sCB, 2)
                    p.s_add_u32(t0, t0, t1)
                    p.s_add_u32(t0, t0, WS_FH)
                    self.flag_store(v(7), v(8), t0)
                self.when(("w0", True), "eq", 0, pub)
                self.stamp("att_mid")
            rdV(b + 2, 0, f"blk{b}")
            if MID < b <= MID + 8:
                self.w2_dma(3 + b - MID - 1)
            self.drip()
            if b >= HP + 4 and hq:
                hq.pop(0)()
            e(10, 16)
        p.I(SM, O, V1[1], S[1][8:16], vIdx)
        assert not hq
        p.s_setprio(0)
        self.stamp("att_loop")

        p.label("L_att_fin")
        p.nop(12)
        l, a, r = v(7), v(8), v(15)
        p.v_mov_b32(l, O[8])
        p.v_mov_b32(r, O[8])
        p.v_add_f32(a, Abs(O[0]), Abs(O[1]))
        p.v_permlane32_swap_b32(l, r)
        for i in range(2, 8):
            p.v_add_f32(a, Abs(O[i]), a)
        p.v_rcp_f32(r, l)
        p.s_mov_b32(t0, f32(2.0 ** 120))
        p.s_mov_b32(t1, 0x7F800000)
        p.v_cmp_nlt_f32(sV2, l, t0)
        p.v_cmp_nlt_f32("vcc", a, t1)
        for i in range(8):
            p.v_mul_f32(O[i], O[i], r)
        p.s_or_b64("vcc", "vcc", sV2)
        p.s_cmp_eq_u32(sSLOW, 0)
        p.s_cselect_b64(sV2, "vcc", 0)
        p.s_cmp_lg_u64(sV2, 0)
        p.s_cbranch_scc1("L_slow")
        for i in range(4):
            p.v_cvt_pk_bf16_f32(O[i], O[2 * i], O[2 * i + 1])
        p.s_lshl_b32(t0, sQB, 3)
        p.s_add_u32(sT[3], t0, sW)
        p.s_lshl_b32(t0, sT[3], 5)
        p.s_add_u32(sT[3], t0, sHEAD)
        p.s_lshl_b32(t0, sT[3], 10)
        p.s_add_u32(t0, t0, WS_O)
        p.buffer_store_dwordx4(O[0:4], self.vL16, rWS, t0, mods="offen sc1", tag="o")
        p.s_lshl_b32(sT[3], sT[3], 2)
        p.s_add_u32(sT[3], sT[3], WS_FO)

    def slow_path(self):
        p = self.p
        A = self.att
        S, O, NM, Q, K, V0, V1, vIdx = A["S"][0], A["O"], A["NM"], A["Q"], A["K"], A["V0"], A["V1"], A["vIdx"]
        t0, t1, t2, cnt = sT[0], sT[1], sT[2], sT[3]
        MF, SM = "v_mfma_f32_32x32x16_bf16", "v_smfmac_f32_32x32x32_bf16"
        p.label("L_slow")
        p.wait_all()
        p.nop(16)
        m = v(7)
        p.v_mov_b32(m, 0xFF800000)
        p.s_lshl_b32(t2, sHEAD, 16)
        p.s_add_u32(t0, t2, WS_K)
        p.s_mov_b32(cnt, 64)
        p.label("L_slow1")
        p.buffer_load_dwordx4(K, self.vL16, rWS, t0, mods="offen sc1")
        p.I(MF, S, K, Q, 0)
        for i in range(0, 16, 2):
            p.v_max3_f32(m, S[i], S[i + 1], m)
        p.s_add_u32(t0, t0, 1024)
        p.s_sub_u32(cnt, cnt, 1)
        p.s_cmp_lg_u32(cnt, 0)
        p.s_cbranch_scc1("L_slow1")
        p.v_mov_b32(v(8), m)
        p.v_permlane32_swap_b32(m, v(8))
        p.v_max_f32(m, m, v(8))
        for i in range(16):
            p.v_sub_f32(NM[i], 0, m)
            p.v_mov_b32(O[i], 0)
        for i in range(4):
            p.v_mov_b32(V0[i], sONES)
            p.v_mov_b32(V1[i], sONES)
        va = v(8)
        p.v_and_b32(v(7), 15, self.vL)
        p.v_lshrrev_b32(va, 5, self.vL)
        p.v_lshl_add_u32(va, va, 4, v(7))
        p.v_lshlrev_b32(va, 4, va)
        p.s_add_u32(t0, t2, WS_K)
        p.s_add_u32(t1, t2, WS_V)
        p.s_mov_b32(cnt, 64)
        p.s_mov_b32(sV2[0], 0xFFFF)
        p.s_mov_b32(sV2[1], 0xFFFF)
        p.label("L_slow2")
        p.nop(16)
        p.buffer_load_dwordx4(K, self.vL16, rWS, t0, mods="offen sc1")
        p.s_mov_b64("exec", sV2)
        p.buffer_load_dwordx4(V0, va, rWS, t1, mods="offen sc1")
        p.buffer_load_dwordx4(V1, va, rWS, t1, mods="offen offset:512 sc1")
        p.s_mov_b64("exec", -1)
        p.wait_all()
        p.I(MF, S, K, Q, NM)
        for i in range(16):
            p.v_exp_f32(S[i], S[i])
        p.I(SM, O, V0, S[0:8], vIdx)
        p.I(SM, O, V1, S[8:16], vIdx)
        p.s_add_u32(t0, t0, 1024)
        p.s_add_u32(t1, t1, 1024)
        p.s_sub_u32(cnt, cnt, 1)
        p.s_cmp_lg_u32(cnt, 0)
        p.s_cbranch_scc1("L_slow2")
        p.s_mov_b32(sSLOW, 1)
        p.s_branch("L_att_fin")
        p.label("L_code_end")

    def tail(self):
        p = self.p
        L = self.vL
        t0, t1 = sT[0], sT[1]
        H = self.H
        MF, MF16 = "v_mfma_f32_32x32x16_bf16", "v_mfma_f32_16x16x32_bf16"
        p.wait(vm=[f"w2_{i}" for i in range(11)])
        self.barrier()
        self.stamp("t2")
        for st in range(11, 19):
            self.w2_dma(st)
        self.drip(2)
        mh, h, r, c = v(80), v(81), v(82), v(83)
        p.v_bfe_u32(mh, L, 4, 1)
        p.v_lshrrev_b32(h, 5, L)
        p.v_bfe_u32(r, L, 2, 2)
        p.v_and_b32(c, 3, L)
        vA = [[v(84), v(85), v(86)], [v(87), v(88), v(89)]]
        a = v(90)
        p.v_lshl_add_u32(a, h, 2, r)
        p.v_lshlrev_b32(a, 7, a)
        p.v_lshl_add_u32(a, mh, 5, a)
        p.v_lshl_add_u32(a, c, 3, a)
        p.v_lshrrev_b32(v(91), 1, r)
        p.v_lshl_add_u32(a, v(91), 6, a)
        p.s_lshr_b32(t0, sW, 1)
        p.s_lshl_b32(t0, t0, 11)
        p.v_add_u32(vA[0][0], t0, a)
        p.v_xor_b32(vA[1][0], 64, vA[0][0])
        for ct in range(2):
            p.v_add_u32(vA[ct][1], 65536, vA[ct][0])
            p.v_add_u32(vA[ct][2], 131072, vA[ct][0])
        acc = [v(16, 16), v(32, 16)]
        ring = [v(48 + 4 * i, 4) for i in range(8)]
        vWoD = v(92)
        p.v_lshrrev_b32(a, 3, L)
        p.v_bfe_u32(v(91), L, 4, 2)
        p.v_lshlrev_b32(v(91), 1, v(91))
        p.v_and_b32(v(93), 7, L)
        p.v_xor_b32(v(91), v(91), v(93))
        p.v_lshlrev_b32(v(91), 4, v(91))
        p.v_lshl_add_u32(a, a, 10, v(91))
        p.s_lshl_b32(t0, sW, 13)
        p.s_lshl_b32(t1, sC3, 7)
        p.s_add_u32(t0, t0, t1)
        p.v_add_u32(vWoD, t0, a)
        vP = v(94)
        XR = v(96, 4)
        vOut = v(95)

        def rd(i):
            st, ct = i >> 1, i & 1
            for e in range(2):
                ad = W2_SLOT[st] + e * 1024
                p.ds_read_b64_tr_b16(ring[i % 8][2 * e:2 * e + 2], vA[ct][ad >> 16], mods=f"offset:{ad & 0xFFFF}")

        def mm(i):
            st, ct = i >> 1, i & 1
            p.I(MF, acc[ct], ring[i % 8], H[4 * st:4 * st + 4], 0 if st == 0 else acc[ct])

        def post1():
            for st in range(19, 28):
                self.w2_dma(st)
            self.stamp("c1")

        def post2():
            for i in range(8):
                def one(i=i):
                    p.s_mov_b32(t0, i * 65536)
                    self.dma(vWoD, rWO, t0, L_WO + i * 8192, "wo", m0add=sW1024)
                self.q.append(one)
            self.stamp("c2")

        def ex(i):
            if i % 2 == 0:
                self.drip()
            if i == self.o.get("oflag_at", 14):
                p.wait(vm="o")
                self.flag_store(v(100), v(101), sT[3])
            if i == 24:
                p.v_and_b32(v(100), 15, L)
                p.v_lshrrev_b32(v(101), 4, L)
                p.v_lshlrev_b32(v(100), 10, v(100))
                p.v_lshl_add_u32(vOut, v(101), 3, v(100))
                p.s_lshl_b32(t0, sR3, 2)
                p.s_and_b32(t1, sW, 3)
                p.s_add_u32(t0, t0, t1)
                p.s_lshl_b32(t0, t0, 14)
                p.s_lshl_b32(t1, sC3, 7)
                p.s_add_u32(t0, t0, t1)
                p.s_lshr_b32(t1, sW, 2)
                p.s_lshl_b32(t1, t1, 6)
                p.s_add_u32(sT[6], t0, t1)
                for b in range(2):
                    p.buffer_load_dwordx2(XR[2 * b:2 * b + 2], vOut, rX, sT[6], mods=f"offen offset:{1024 + 32 * b}")
            if i == 48:
                p.s_lshl_b32(t0, sR3, 1)
                p.s_bfe_u32(t1, sW, 0x10001)
                p.s_add_u32(t0, t0, t1)
                p.s_lshl_b32(t0, t0, 5)
                p.s_lshr_b32(t1, sW, 2)
                p.s_lshl_b32(t1, t1, 4)
                p.s_add_u32(sT[7], t0, t1)
                p.s_lshl_b32(sT[4], sT[7], 2)
                p.s_add_u32(sT[4], sT[4], WS_FO)
                self.poll_issue(vP, self.vFl, sT[4])

        def w(lo, hi):
            def pre():
                self.drip(20)
                p.wait(vm=[f"w2_{i}" for i in range(lo, hi)])
            return pre

        bars = {22: (2, w(11, 19), post1), 38: (2, w(19, 28), post2)}
        self.gemm_stream(56, rd, mm, 6, bars, ex)
        self.drip(20)
        self.stamp("down_mm")
        self.poll_check(vP, self.vFl, sT[4])
        self.stamp("o_seen")
        OF = v(48, 32)
        vO = v(90)
        g4 = v(91)
        p.v_lshrrev_b32(g4, 4, L)
        p.v_and_b32(v(100), 15, L)
        p.v_and_b32(v(101), 1, g4)
        p.v_lshl_add_u32(v(101), v(101), 5, v(100))
        p.s_and_b32(t0, sW, 1)
        p.s_lshl_b32(t0, t0, 4)
        p.v_add_u32(v(101), t0, v(101))
        p.v_lshlrev_b32(v(101), 4, v(101))
        p.v_lshl_add_u32(vO, h, 10, v(101))
        p.s_lshl_b32(t0, sT[7], 10)
        p.s_add_u32(t0, t0, WS_O)
        for j in range(8):
            if j and j % 2 == 0:
                p.s_add_u32(t0, t0, 4096)
            p.buffer_load_dwordx4(OF[4 * j:4 * j + 4], vO, rWS, t0, mods=f"offen offset:{(j % 2) * 2048} sc1")
        p.wait(vm="wo")
        self.barrier()
        self.stamp("c3")
        tk = v(102)
        p.v_and_b32(tk, 31, L)
        p.s_and_b32(t0, sW, 1)
        p.s_lshl_b32(t0, t0, 5)
        p.v_add_u32(tk, t0, tk)
        p.v_xor_b32(v(103), h, v(100))
        p.v_lshlrev_b32(v(103), 4, v(103))
        p.v_lshl_add_u32(tk, tk, 8, v(103))
        p.s_lshr_b32(t0, sW, 1)
        p.s_lshl_b32(t0, t0, 14)
        p.s_add_u32(t0, t0, L_RED)
        p.v_add_u32(tk, t0, tk)
        for ct in range(2):
            for j in range(4):
                k = (8 * ct + 2 * j) << 4
                ad = v(136 + 4 * ct + j)
                p.v_xor_b32(ad, k, tk)
                p.ds_write_b128(ad, acc[ct][4 * j:4 * j + 4])
        WO = v(128, 128)
        vB = [v(84), v(85), v(86), v(87)]
        hh = v(88)
        p.v_and_b32(hh, 1, g4)
        p.v_lshlrev_b32(a, 4, h)
        p.v_lshl_add_u32(a, hh, 2, a)
        p.v_add_u32(a, a, r)
        p.v_lshlrev_b32(a, 7, a)
        p.v_lshl_add_u32(a, c, 3, a)
        p.v_lshrrev_b32(v(89), 1, r)
        p.v_lshl_add_u32(v(89), hh, 1, v(89))
        p.s_lshr_b32(t0, sW, 2)
        p.s_lshl_b32(t1, t0, 1)
        p.v_xor_b32(v(89), t1, v(89))
        p.v_lshl_add_u32(a, v(89), 5, a)
        p.s_lshl_b32(t1, t0, 15)
        p.v_add_u32(vB[0], t1, a)
        for ct in range(1, 4):
            p.v_xor_b32(vB[ct], 32 * ct, vB[0])
        vR = [v(92), v(93)]
        p.s_lshl_b32(t1, t0, 3)
        p.v_add_u32(v(89), t1, g4)
        p.v_xor_b32(v(89), v(89), v(100))
        p.v_lshlrev_b32(v(89), 4, v(89))
        p.v_lshl_add_u32(v(89), v(100), 8, v(89))
        p.s_and_b32(t1, sW, 3)
        p.s_lshl_b32(t1, t1, 12)
        p.s_add_u32(t1, t1, L_RED)
        p.v_add_u32(vR[0], t1, v(89))
        p.v_xor_b32(vR[1], 64, vR[0])
        self.barrier()
        self.stamp("c4")
        PR = v(16, 32)
        for kq in range(4):
            for b in range(2):
                p.ds_read_b128(PR[8 * kq + 4 * b:8 * kq + 4 * b + 4], vR[b], mods=f"offset:{kq * 16384}")

        def wo_rd(j):
            for ct in range(4):
                for e in range(2):
                    d = WO[16 * j + 4 * ct + 2 * e:16 * j + 4 * ct + 2 * e + 2]
                    p.ds_read_b64_tr_b16(d, vB[ct], mods=f"offset:{L_WO + j * 4096 + e * 1024}")

        wo_rd(0)
        G = PR[0:8]
        tmp = [v(104 + i) for i in range(8)]
        p.s_mov_b32(t0, f32(-LOG2E))
        for i in range(8):
            p.v_add_f32(PR[i], PR[i], PR[8 + i])
            p.v_add_f32(PR[16 + i], PR[16 + i], PR[24 + i])
        wo_rd(1)
        for i in range(8):
            p.v_add_f32(G[i], PR[i], PR[16 + i])
        for i in range(8):
            p.v_mul_f32(tmp[i], t0, G[i])
        wo_rd(2)
        for i in range(8):
            p.v_exp_f32(tmp[i], tmp[i])
        wo_rd(3)
        for i in range(8):
            p.v_add_f32(tmp[i], 1.0, tmp[i])
        wo_rd(4)
        for i in range(8):
            p.v_rcp_f32(tmp[i], tmp[i])
        wo_rd(5)
        for i in range(8):
            p.v_mul_f32(G[i], G[i], tmp[i])
        wo_rd(6)
        XU = [v(112 + i) for i in range(8)]
        for i in range(4):
            p.v_lshlrev_b32(XU[2 * i], 16, XR[i])
            p.v_and_b32(XU[2 * i + 1], sMASK, XR[i])
        wo_rd(7)
        vEw, vEr = v(92), v(93)
        p.s_lshl_b32(t0, sW, 11)
        p.s_add_u32(t0, t0, L_EX)
        p.v_add_u32(vEw, t0, self.vL16)
        p.s_xor_b32(t1, sW, 4)
        p.s_lshl_b32(t1, t1, 11)
        p.s_add_u32(t1, t1, L_EX)
        p.v_add_u32(vEr, t1, self.vL16)
        self.stamp("g_done")
        SA = v(24, 16)
        for j in range(8):
            for ct in (2, 3, 0, 1):
                d = SA[4 * ct:4 * ct + 4]
                p.I(MF16, d, WO[16 * j + 4 * ct:16 * j + 4 * ct + 4], OF[4 * j:4 * j + 4], 0 if j == 0 else d)
        self.stamp("wo_mm")
        for b in range(2):
            p.ds_write_b128(vEw, SA[8 + 4 * b:12 + 4 * b], mods=f"offset:{b * 1024}")
        self.barrier()
        for b in range(2):
            p.ds_read_b128(SA[8 + 4 * b:12 + 4 * b], vEr, mods=f"offset:{b * 1024}")
        for i in range(8):
            p.v_add_f32(SA[i], SA[i], SA[8 + i])
        for i in range(8):
            p.v_fma_f32(SA[i], SA[i], G[i], XU[i])
        for i in range(4):
            p.v_cvt_pk_bf16_f32(SA[i], SA[2 * i], SA[2 * i + 1])
        for b in range(2):
            p.buffer_store_dwordx2(SA[2 * b:2 * b + 2], vOut, rOUT, sT[6], mods=f"offen offset:{32 * b}")
        p.s_or_b32(t0, sG, sW)
        p.s_cmp_lg_u32(t0, 0)
        p.s_cbranch_scc1("L_noep")
        p.s_mov_b32(t0, WS_E)
        self.flag_store(v(100), v(101), t0)
        p.label("L_noep")
        self.stamp("end")
        if self.o.get("stamp"):
            p.wait_all()
            p.raw("    s_memrealtime s[100:101]")
            p.wait_smem()
            p.s_lshl_b32(t0, sG, 3)
            p.s_add_u32(t0, t0, sW)
            p.s_lshl_b32(t0, t0, 7)
            p.s_add_u32(t0, t0, WS_STAMP)
            p.v_mov_b32(v(1), 0)
            n = len(self.o["stamp_names"])
            vals = STAMP_REGS[:n] + [s(98), s(100)]
            for i, x in enumerate(vals):
                p.v_mov_b32(v(2), x)
                p.buffer_store_dword(v(2), v(1), rWS, t0, mods=f"offen offset:{4 * i}")
                p.wait_all()
            if self.o.get("dbg") is not None:
                p.s_cmp_lg_u32(sG, self.o["dbg"])
                p.s_cbranch_scc1("L_nodbg")
                p.s_cmp_lg_u32(sW, 0)
                p.s_cbranch_scc1("L_nodbg")
                p.raw("    s_load_dwordx2 s[24:25], s[0:1], 64")
                p.wait_smem()
                p.s_mov_b32(s(26), 256)
                p.s_mov_b32(s(27), 0x00020000)
                for i, x in enumerate(vals[1:n] + [s(100)]):
                    p.s_sub_u32(t1, x, vals[0] if i < n - 1 else s(98))
                    p.v_mov_b32(v(2), t1)
                    p.buffer_store_dword(v(2), v(1), s(24, 4), 0, mods=f"offen offset:{4 * i}")
                    p.wait_all()
                p.label("L_nodbg")
        if self.o.get("padto"):
            p.wait_all()
            p.label("L_pad")
            p.raw("    s_memrealtime s[100:101]")
            p.wait_smem()
            p.s_sub_u32(t0, s(100), s(98))
            p.s_cmp_lt_u32(t0, self.o["padto"])
            p.s_cbranch_scc1("L_pad")
        p.label("L_exit")
        p.s_endpgm()

    def build(self):
        p = self.p
        self.entry()
        p.s_cmp_ge_u32(sW, 4)
        p.s_cbranch_scc1("L_hf1")
        st = p.split("lo", True)
        self.layernorm(0)
        self.qkv(0)
        p.s_branch("L_up")
        end0 = p.fork()
        p.restore(st)
        p.label("L_hf1")
        self.layernorm(1)
        self.qkv(1)
        p.label("L_up")
        p.join(end0)
        self.up()
        self.attention()
        self.tail()
        self.slow_path()
        head = open("cdna_kernels/" + NAME[:-7] + ".s.ref").read().split("; Override launch")[0]
        return (head
                + f"; @launch grid=(256,1,1) block=(512,1,1) lds={LDS_BYTES}\n"
                + "; generated by gen/gen.py: one persistent launch, phases LN+QKV | FFN up | attention | FFN down + out projection\n"
                + '.amdgcn_target "amdgcn-amd-amdhsa--gfx950"\n.text\n'
                + f".globl {NAME}\n.p2align 8\n.type {NAME},@function\n{NAME}:\n"
                + p.text()
                + '.section .rodata,"a"\n.p2align 6\n'
                + f".amdhsa_kernel {NAME}\n"
                + "  .amdhsa_next_free_vgpr 256\n  .amdhsa_next_free_sgpr 102\n  .amdhsa_accum_offset 256\n"
                + "  .amdhsa_group_segment_fixed_size 0\n  .amdhsa_kernarg_size 80\n"
                + "  .amdhsa_user_sgpr_count 2\n  .amdhsa_user_sgpr_kernarg_segment_ptr 1\n"
                + "  .amdhsa_system_sgpr_workgroup_id_x 1\n.end_amdhsa_kernel\n")


def generate(**opt):
    if opt.get("stamp"):
        opt["stamp_names"] = {}
    g = Gen(opt)
    text = g.build()
    return text, g


if __name__ == "__main__":
    out = sys.argv[1] if len(sys.argv) > 1 else "cdna_kernels/" + NAME[:-7] + ".s"
    opt = eval(sys.argv[2]) if len(sys.argv) > 2 else {}
    text, g = generate(**opt)
    open(out, "w").write(text)
    print("written", out, "instr counts", g.p.count, "nop states", g.p.nops, file=sys.stderr)
    if opt.get("stamp"):
        print(g.o["stamp_names"], file=sys.stderr)
```
